```python
import torch

def _softmax(x, axis=-1):
    return torch.softmax(x, dim=axis)
def _gelu(x):
    return torch.nn.functional.gelu(x, approximate="tanh")
def _silu(x):
    return torch.nn.functional.silu(x)
def _sigmoid(x):
    return torch.sigmoid(x)
def _layernorm(x, axis=-1, eps=1e-5):
    m = x.mean(dim=axis, keepdim=True)
    v = x.var(dim=axis, keepdim=True, unbiased=False)
    return (x - m) / torch.sqrt(v + eps)
def _scatter_add(tgt, idx, src, axis=0):
    return tgt.clone().index_add_(axis, idx, src)
def _segment_sum(src, seg, n):
    out = torch.zeros((n,) + src.shape[1:], dtype=src.dtype)
    return out.index_add_(0, seg, src)
def _pad(x, pw):
    flat = tuple(v for pair in reversed(pw) for v in pair)
    return torch.nn.functional.pad(x, flat)

kernel_name = 'sequential_preLN__sliding_local_dilated__glu_gated_bilinear__prompt'

def setup_inputs():

    _w = (lambda a: (lambda t: t.to(torch.bfloat16) if t.is_floating_point() else t)(torch.as_tensor(a)))
    def _A_setup():
        B, S, D = 1, 2048, 640
        return {
            "x": _w((lambda *s: torch.randn(*s, dtype=torch.bfloat16) * 0.05)(B, S, D)),
            "wqkv": _w((lambda *s: torch.randn(*s, dtype=torch.bfloat16) * 0.05)(D, 3 * D)),
            "wo": _w((lambda *s: torch.randn(*s, dtype=torch.bfloat16) * 0.05)(D, D)),
        }
    _A_in = _A_setup()

    def _B_setup():
        B, S, D, F = 1, 2048, 640, 1728
        return {
            "x": _w((lambda *s: torch.randn(*s, dtype=torch.bfloat16) * 0.05)(B, S, D)),
            "w_gate": _w((lambda *s: torch.randn(*s, dtype=torch.bfloat16) * 0.8)(D, F) * (D ** -0.5)),
            "w_up": _w((lambda *s: torch.randn(*s, dtype=torch.bfloat16) * 0.8)(D, F) * (D ** -0.5)),
            "w_down": _w((lambda *s: torch.randn(*s, dtype=torch.bfloat16) * 0.8)(F, D) * (F ** -0.5)),
        }
    _B_in = _B_setup()

    return {
        "A_x": _A_in["x"],
        "A_wqkv": _A_in["wqkv"],
        "A_wo": _A_in["wo"],
        "B_x": _B_in["x"],
        "B_w_gate": _B_in["w_gate"],
        "B_w_up": _B_in["w_up"],
        "B_w_down": _B_in["w_down"],
    }

def reference(A_x, A_wqkv, A_wo, B_x, B_w_gate, B_w_up, B_w_down):
    def _A_ref(x, wqkv, wo):
        B, S, D = x.shape
        H = 32; Dh = D // H
        W, dil = 8, 2
        qkv = (lambda x, *d: x.permute(*d))((x @ wqkv).reshape(B, S, 3, H, Dh), 2, 0, 3, 1, 4)
        q, k, v = qkv[0], qkv[1], qkv[2]
        scale = Dh ** -0.5
        pos = torch.arange(S)
        off = torch.arange(W) * dil
        idx = pos[:, None] - off[None, :]
        mask = idx >= 0
        idx_c = torch.where(mask, idx, 0).reshape(-1)
        kg = k[:, :, idx_c, :].reshape(B, H, S, W, Dh)
        vg = v[:, :, idx_c, :].reshape(B, H, S, W, Dh)
        logits = torch.einsum("bhsd,bhswd->bhsw", q, kg) * scale
        logits = torch.where(mask[None, None, :, :], logits, -1e9)
        attn = _softmax(logits, axis=-1)
        o = torch.einsum("bhsw,bhswd->bhsd", attn, vg)
        return (lambda x, *d: x.permute(*d))(o, 0, 2, 1, 3).reshape(B, S, D) @ wo

    def _B_ref(x, w_gate, w_up, w_down):
        g = torch.einsum("bsd,df->bsf", x, w_gate)
        u = torch.einsum("bsd,df->bsf", x, w_up)
        h = g * u
        return torch.einsum("bsf,fd->bsd", h, w_down)

    x = A_x
    h = x + _A_ref(_layernorm(x, axis=-1), A_wqkv, A_wo)
    h2 = h + _B_ref(_layernorm(h, axis=-1), B_w_gate, B_w_up, B_w_down)
    return h2
```

```python
import sys
NAME = "sequential_preLN__sliding_local_dilated__glu_gated_bilinear__prompt"
HDR = open('cdna_kernels/%s.s.ref' % NAME).read().split('\n')
hdr = [l for l in HDR if l.startswith(';') and '@launch' not in l and 'Override' not in l and 'grid=ceil' not in l]

S, D, F = 2048, 640, 1728
WS_XN, WS_QKV, WS_O, WS_H, WS_HN, WS_HH = 0, 4<<20, 12<<20, 16<<20, 20<<20, 24<<20

class K:
    def __init__(s, name):
        s.name = name; s.l = []
    def __call__(s, t):
        for x in t.strip('\n').split('\n'):
            s.l.append('    ' + x.strip() if not x.strip().endswith(':') else x.strip())
    def text(s, vg, sg=102):
        acc = (vg + 3) // 4 * 4
        return (f".text\n.globl {s.name}\n.p2align 8\n.type {s.name},@function\n{s.name}:\n" + '\n'.join(s.l) +
                f"\n    s_endpgm\n.section .rodata,\"a\"\n.p2align 6\n.amdhsa_kernel {s.name}\n"
                f"  .amdhsa_next_free_vgpr {vg}\n  .amdhsa_next_free_sgpr {sg}\n  .amdhsa_accum_offset {acc}\n"
                "  .amdhsa_group_segment_fixed_size 0\n  .amdhsa_kernarg_size 80\n  .amdhsa_user_sgpr_count 2\n"
                "  .amdhsa_user_sgpr_kernarg_segment_ptr 1\n  .amdhsa_system_sgpr_workgroup_id_x 1\n.end_amdhsa_kernel\n")

def srd(k, base, slot, wsoff, nbytes):
    k(f"s_load_dwordx2 s[{base}:{base+1}], s[0:1], {slot*8}")
    k("s_waitcnt lgkmcnt(0)")
    if wsoff:
        k(f"s_add_u32 s{base}, s{base}, {wsoff}")
        k(f"s_addc_u32 s{base+1}, s{base+1}, 0")
    k(f"s_mov_b32 s{base+2}, {nbytes}")
    k(f"s_mov_b32 s{base+3}, 0x00020000")

def allreduce(k, v, tmp, addr, lane):
    for m in (1, 2, 4, 8, 16, 32):
        k(f"v_xor_b32 v{addr}, {m}, v{lane}")
        k(f"v_lshlrev_b32 v{addr}, 2, v{addr}")
        k(f"ds_bpermute_b32 v{tmp}, v{addr}, v{v}")
        k("s_waitcnt lgkmcnt(0)")
        k(f"v_add_f32 v{v}, v{v}, v{tmp}")

def k_ln(name, src, dst):
    k = K(name)
    k(f"s_cmp_ge_u32 s2, {S//4}")
    k(f"s_cbranch_scc1 {name}_end")
    srd(k, 4, *src, S*D*2)
    srd(k, 8, *dst, S*D*2)
    k("v_and_b32 v1, 63, v0")
    k("v_lshrrev_b32 v2, 6, v0")
    k("s_lshl_b32 s3, s2, 2")
    k("v_add_u32 v2, s3, v2")
    k("s_movk_i32 s12, 1280")
    k("v_mul_lo_u32 v2, v2, s12")
    k("v_lshl_add_u32 v2, v1, 2, v2")
    for i in range(5):
        k(f"buffer_load_dword v{10+i}, v2, s[4:7], 0 offen offset:{256*i}")
    k("s_waitcnt vmcnt(0)")
    for i in range(5):
        k(f"v_lshlrev_b32 v{20+2*i}, 16, v{10+i}")
        k(f"v_and_b32 v{21+2*i}, 0xffff0000, v{10+i}")
    k("v_mov_b32 v3, 0")
    for i in range(10):
        k(f"v_add_f32 v3, v3, v{20+i}")
    allreduce(k, 3, 4, 5, 1)
    k(f"v_mul_f32 v3, {1.0/640!r}, v3")
    k("v_mov_b32 v6, 0")
    for i in range(10):
        k(f"v_sub_f32 v{20+i}, v{20+i}, v3")
        k(f"v_fmac_f32 v6, v{20+i}, v{20+i}")
    allreduce(k, 6, 4, 5, 1)
    k(f"v_mul_f32 v6, {1.0/640!r}, v6")
    k("v_add_f32 v6, 1e-5, v6")
    k("v_rsq_f32 v6, v6")
    k("s_nop 1")
    for i in range(10):
        k(f"v_mul_f32 v{20+i}, v{20+i}, v6")
    for i in range(5):
        k(f"v_cvt_pk_bf16_f32 v{10+i}, v{20+2*i}, v{21+2*i}")
    for i in range(5):
        k(f"buffer_store_dword v{10+i}, v2, s[8:11], 0 offen offset:{256*i}")
    k(f"{name}_end:")
    return k.text(32)

def k_gemm(name, A, Kd, Bs, N, out, res=None):
    R = 4
    k = K(name)
    ncb = (N + 127)//128
    nw = (S//R) * ncb
    nwg = (nw + 3)//4
    k(f"s_cmp_ge_u32 s2, {nwg}")
    k(f"s_cbranch_scc1 {name}_end")
    k(f"s_load_dwordx2 s[4:5], s[0:1], {A[0]*8}")
    k("s_waitcnt lgkmcnt(0)")
    if A[1]:
        k(f"s_add_u32 s4, s4, {A[1]}")
        k("s_addc_u32 s5, s5, 0")
    for i, B in enumerate(Bs):
        srd(k, 8+4*i, B, 0, Kd*N*2)
    srd(k, 16, *out, S*N*2)
    if res: srd(k, 20, *res, S*N*2)
    k("v_lshrrev_b32 v2, 6, v0")
    k("s_nop 0")
    k("v_readfirstlane_b32 s24, v2")
    k("s_nop 3")
    k("s_lshl_b32 s3, s2, 2")
    k("s_add_u32 s24, s24, s3")
    magic = (1 << 32)//ncb + 1
    k(f"s_mov_b32 s25, {magic}")
    k("s_mul_hi_u32 s26, s24, s25")
    k(f"s_mul_i32 s27, s26, {ncb}")
    k("s_sub_u32 s27, s24, s27")
    k(f"s_cmp_ge_u32 s26, {S//R}")
    k(f"s_cbranch_scc1 {name}_end")
    k("v_and_b32 v1, 63, v0")
    k("s_lshl_b32 s28, s27, 8")
    k("v_lshl_add_u32 v3, v1, 2, s28")
    k(f"v_mov_b32 v4, 0x7fffffff")
    k(f"s_mov_b32 s29, {N*2}")
    k("v_cmp_gt_u32 vcc, s29, v3")
    k("s_nop 1")
    k("v_cndmask_b32 v5, v4, v3, vcc")
    k(f"s_mul_i32 s30, s26, {R*Kd*2}")
    k("s_add_u32 s4, s4, s30")
    k("s_addc_u32 s5, s5, 0")
    nacc = len(Bs)
    for b in range(nacc):
        for r in range(R):
            for j in range(2):
                k(f"v_mov_b32 v{40+b*16+r*2+j}, 0")
    k("s_mov_b32 s31, 0")
    k("s_mov_b32 s33, 0")
    k(f"{name}_loop:")
    for r in range(R):
        k(f"s_load_dwordx8 s[{36+8*r}:{43+8*r}], s[4:5], {r*Kd*2}")
    for b in range(nacc):
        k(f"s_mov_b32 s34, s33")
        for kk in range(16):
            k(f"buffer_load_dword v{8+b*16+kk}, v5, s[{8+4*b}:{11+4*b}], s34 offen")
            k(f"s_add_u32 s34, s34, {N*2}")
    k("s_waitcnt vmcnt(0) lgkmcnt(0)")
    for kk in range(16):
        for b in range(nacc):
            k(f"v_lshlrev_b32 v6, 16, v{8+b*16+kk}")
            k(f"v_and_b32 v7, 0xffff0000, v{8+b*16+kk}")
            for r in range(R):
                sr = 36 + 8*r + kk//2
                if kk % 2 == 0: k(f"s_lshl_b32 s35, s{sr}, 16")
                else: k(f"s_and_b32 s35, s{sr}, 0xffff0000")
                k(f"v_fmac_f32 v{40+b*16+r*2}, s35, v6")
                k(f"v_fmac_f32 v{40+b*16+r*2+1}, s35, v7")
    k("s_add_u32 s4, s4, 32")
    k("s_addc_u32 s5, s5, 0")
    k(f"s_add_u32 s33, s33, {16*N*2}")
    k("s_add_u32 s31, s31, 16")
    k(f"s_cmp_lt_u32 s31, {Kd}")
    k(f"s_cbranch_scc1 {name}_loop")
    k(f"s_mul_i32 s30, s26, {R*N*2}")
    k("v_add_u32 v5, s30, v5")
    for r in range(R):
        a0, a1 = 40+r*2, 41+r*2
        if nacc == 2:
            k(f"v_mul_f32 v{a0}, v{a0}, v{a0+16}")
            k(f"v_mul_f32 v{a1}, v{a1}, v{a1+16}")
        if res:
            k(f"buffer_load_dword v6, v5, s[20:23], 0 offen offset:{r*N*2}" if r*N*2 < 4096 else
              f"s_mov_b32 s34, {r*N*2}\nbuffer_load_dword v6, v5, s[20:23], s34 offen")
            k("s_waitcnt vmcnt(0)")
            k("v_lshlrev_b32 v7, 16, v6")
            k(f"v_add_f32 v{a0}, v{a0}, v7")
            k("v_and_b32 v7, 0xffff0000, v6")
            k(f"v_add_f32 v{a1}, v{a1}, v7")
        k(f"v_cvt_pk_bf16_f32 v6, v{a0}, v{a1}")
        k(f"s_mov_b32 s34, {r*N*2}")
        k(f"buffer_store_dword v6, v5, s[16:19], s34 offen")
        k("s_nop 1")
    k(f"{name}_end:")
    return k.text(80)

def k_attn(name):
    k = K(name)
    k(f"s_cmp_ge_u32 s2, {S*32//256}")
    k(f"s_cbranch_scc1 {name}_end")
    srd(k, 4, 9, WS_QKV, S*3*D*2)
    srd(k, 8, 9, WS_O, S*D*2)
    k("s_lshl_b32 s3, s2, 8")
    k("v_add_u32 v1, s3, v0")
    k("v_and_b32 v2, 31, v1")
    k("v_lshrrev_b32 v3, 5, v1")
    k("v_mul_u32_u24 v4, 40, v2")
    k("s_movk_i32 s12, 3840")
    k("v_mul_lo_u32 v5, v3, s12")
    k("v_add_u32 v5, v5, v4")
    for i in range(5):
        k(f"buffer_load_dwordx2 v[{10+2*i}:{11+2*i}], v5, s[4:7], 0 offen offset:{8*i}")
    k("s_waitcnt vmcnt(0)")
    for i in range(10):
        k(f"v_lshlrev_b32 v{20+2*i}, 16, v{10+i}")
        k(f"v_and_b32 v{21+2*i}, 0xffff0000, v{10+i}")
    for j in range(8):
        k(f"v_subrev_u32 v6, {2*j}, v3")
        k("v_max_i32 v6, 0, v6")
        k("v_mul_lo_u32 v7, v6, s12")
        k("v_add_u32 v7, v7, v4")
        for i in range(5):
            k(f"buffer_load_dwordx2 v[{10+2*i}:{11+2*i}], v7, s[4:7], 0 offen offset:{1280+8*i}")
        k("s_waitcnt vmcnt(0)")
        k(f"v_mov_b32 v{40+j}, 0")
        for i in range(10):
            k(f"v_lshlrev_b32 v8, 16, v{10+i}")
            k(f"v_fmac_f32 v{40+j}, v8, v{20+2*i}")
            k(f"v_and_b32 v8, 0xffff0000, v{10+i}")
            k(f"v_fmac_f32 v{40+j}, v8, v{21+2*i}")
        sc = (20 ** -0.5) * 1.4426950408889634
        k(f"v_mul_f32 v{40+j}, {sc!r}, v{40+j}")
        k(f"v_cmp_le_u32 vcc, {2*j}, v3")
        k("v_mov_b32 v8, -1e9")
        k("s_nop 1")
        k(f"v_cndmask_b32 v{40+j}, v8, v{40+j}, vcc")
    k("v_max_f32 v9, v40, v41")
    for j in range(2, 8):
        k(f"v_max_f32 v9, v9, v{40+j}")
    for j in range(8):
        k(f"v_sub_f32 v{40+j}, v{40+j}, v9")
        k(f"v_exp_f32 v{40+j}, v{40+j}")
    k("s_nop 1")
    k("v_add_f32 v9, v40, v41")
    for j in range(2, 8):
        k(f"v_add_f32 v9, v9, v{40+j}")
    k("v_rcp_f32 v9, v9")
    k("s_nop 1")
    for j in range(8):
        k(f"v_mul_f32 v{40+j}, v{40+j}, v9")
    for i in range(20):
        k(f"v_mov_b32 v{50+i}, 0")
    for j in range(8):
        k(f"v_subrev_u32 v6, {2*j}, v3")
        k("v_max_i32 v6, 0, v6")
        k("v_mul_lo_u32 v7, v6, s12")
        k("v_add_u32 v7, v7, v4")
        for i in range(5):
            k(f"buffer_load_dwordx2 v[{10+2*i}:{11+2*i}], v7, s[4:7], 0 offen offset:{2560+8*i}")
        k("s_waitcnt vmcnt(0)")
        for i in range(10):
            k(f"v_lshlrev_b32 v8, 16, v{10+i}")
            k(f"v_fmac_f32 v{50+2*i}, v8, v{40+j}")
            k(f"v_and_b32 v8, 0xffff0000, v{10+i}")
            k(f"v_fmac_f32 v{51+2*i}, v8, v{40+j}")
    for i in range(10):
        k(f"v_cvt_pk_bf16_f32 v{10+i}, v{50+2*i}, v{51+2*i}")
    k("s_movk_i32 s13, 1280")
    k("v_mul_lo_u32 v5, v3, s13")
    k("v_add_u32 v5, v5, v4")
    for i in range(5):
        k(f"buffer_store_dwordx2 v[{10+2*i}:{11+2*i}], v5, s[8:11], 0 offen offset:{8*i}")
    k(f"{name}_end:")
    return k.text(80)

def k_empty(name):
    k = K(name)
    k("s_nop 0")
    return k.text(8, 16)

def main(nempty, path):
    launches = []
    body = []
    MAIN = NAME + "_kernel"
    body.append(k_ln(MAIN, (0, 0), (9, WS_XN))); launches.append((MAIN, S//4))
    def g(name, A, Kd, Bs, N, out, res=None):
        body.append(k_gemm(name, A, Kd, Bs, N, out, res))
        ncb = (N+127)//128
        launches.append((name, ((S//4)*ncb + 3)//4))
    g("qkv_kernel", (9, WS_XN), D, [1], 3*D, (9, WS_QKV))
    body.append(k_attn("attn_kernel")); launches.append(("attn_kernel", S*32//256))
    g("wo_kernel", (9, WS_O), D, [2], D, (9, WS_H), (0, 0))
    body.append(k_ln("ln2_kernel", (9, WS_H), (9, WS_HN))); launches.append(("ln2_kernel", S//4))
    g("gu_kernel", (9, WS_HN), D, [4, 5], F, (9, WS_HH))
    g("down_kernel", (9, WS_HH), F, [6], D, (7, 0), (9, WS_H))
    if nempty:
        body.append(k_empty("empty_kernel"))
        launches += [("empty_kernel", 256)] * nempty
    out = '\n'.join(hdr) + '\n'
    for n, g_ in launches:
        out += f"; @launch kernel={n} grid=({g_},1,1) block=(256,1,1) lds=0\n"
    out += '.amdgcn_target "amdgcn-amd-amdhsa--gfx950"\n' + '\n'.join(body)
    open(path, 'w').write(out)

if __name__ == '__main__':
    main(int(sys.argv[1]), sys.argv[2])
```

```python
from asmlib import Kern
S, D, F = 2048, 640, 1728
NAME = "sequential_preLN__sliding_local_dilated__glu_gated_bilinear__prompt"
WS_XN  = 0x0000000
WS_W1P = 0x0400000
WS_WOP = 0x0800000
WS_WGU = 0x0A00000
WS_WDP = 0x1000000
WS_CSP = 0x1400000
WS_O   = 0x1500000
WS_H   = 0x1800000
WS_ST  = 0x1B00000
WS_HH  = 0x1C00000
WS_END = 0x2400000
WS_BYTES = 268435456
SRD3 = 0x00020000

def load_args(k):
    k("s_load_dwordx16 s[16:31], s[0:1], 0")
    k("s_load_dwordx4 s[32:35], s[0:1], 64")

def mk_srd(k, b, lo, nbytes):
    k(f"s_mov_b32 s{b}, s{lo}")
    k(f"s_mov_b32 s{b+1}, s{lo+1}")
    k(f"s_mov_b32 s{b+2}, {nbytes}")
    k(f"s_mov_b32 s{b+3}, 0x00020000")

def wave_id(k, sdst, vtmp):
    k(f"v_lshrrev_b32 v{vtmp}, 6, v0")
    k("s_nop 0")
    k(f"v_readfirstlane_b32 s{sdst}, v{vtmp}")

def udiv_magic(d, maxn):
    m = (1 << 32) // d + 1
    assert all(((n * m) >> 32) == n // d for n in range(maxn + 1))
    return m


class Queue:
    def __init__(s, k, kind, maxcnt):
        s.k = k; s.kind = kind; s.q = []; s.maxcnt = maxcnt
    def issue(s, tag):
        s.q.append(tag)
    def wait(s, tag):
        if tag not in s.q: return
        i = s.q.index(tag)
        n = len(s.q) - 1 - i
        assert n <= s.maxcnt, (s.kind, n)
        s.k(f"s_waitcnt {s.kind}({n})")
        s.q = s.q[i+1:]
    def drain(s):
        if s.q:
            s.k(f"s_waitcnt {s.kind}(0)")
            s.q = []


import os
STAMPS = os.environ.get('STAMPS', '0') == '1'
WS_STAMP = 0x3000000
NSTAMP = 16
def stamp(k, idx):
    if STAMPS:
        assert idx < NSTAMP
        k(f"s_memrealtime s[{64+2*idx}:{65+2*idx}]")
def stamp_init(k):
    if STAMPS:
        for i in range(NSTAMP): k(f"s_mov_b32 s{64+2*i}, 0")
def stamp_flush(k, kidx):
    if not STAMPS: return
    k("s_waitcnt lgkmcnt(0)")
    k("s_mov_b32 s96, s34\ns_mov_b32 s97, s35\ns_mov_b32 s98, 0x10000000\ns_mov_b32 s99, 0x00020000")
    k("s_lshl_b32 s100, s2, 3\ns_add_u32 s100, s100, s3\ns_lshl_b32 s100, s100, 6")
    k(f"s_add_u32 s100, s100, {WS_STAMP + kidx*0x40000}")
    k("s_mov_b64 exec, 1")
    k("v_mov_b32 v0, 0")
    for i in range(NSTAMP):
        k(f"v_mov_b32 v1, s{64+2*i}")
        k(f"buffer_store_dword v1, v0, s[96:99], s100 offen offset:{4*i}")
    k("s_waitcnt vmcnt(0)")
```

```python
from gen_common import *

def allreduce_rows(k, v, t):
    k(f"v_mov_b32 v{t}, v{v}")
    k("s_nop 1")
    k(f"v_permlane16_swap_b32 v{t}, v{v}")
    k("s_nop 1")
    k(f"v_add_f32 v{v}, v{v}, v{t}")
    k(f"v_mov_b32 v{t}, v{v}")
    k("s_nop 1")
    k(f"v_permlane32_swap_b32 v{t}, v{v}")
    k("s_nop 1")
    k(f"v_add_f32 v{v}, v{v}, v{t}")

def prep_body(k, N):
    NJE, NJA, NJB, NJC, NJD = 512, 320, 270, 540, 200
    mk_srd(k, 8, 34, WS_BYTES)
    k("s_lshl_b32 s36, s3, 8")
    k("s_add_u32 s36, s36, s2")
    k(f"s_cmp_lt_u32 s36, {NJE}")
    k(f"s_cbranch_scc1 {N}_JE")
    k(f"s_sub_u32 s36, s36, {NJE}")
    k(f"s_cmp_lt_u32 s36, {NJA}")
    k(f"s_cbranch_scc1 {N}_JA")
    k(f"s_sub_u32 s36, s36, {NJA}")
    k(f"s_cmp_lt_u32 s36, {NJB}")
    k(f"s_cbranch_scc1 {N}_JB")
    k(f"s_sub_u32 s36, s36, {NJB}")
    k(f"s_cmp_lt_u32 s36, {NJC}")
    k(f"s_cbranch_scc1 {N}_JC")
    k(f"s_sub_u32 s36, s36, {NJC}")
    k(f"s_cmp_lt_u32 s36, {NJD}")
    k(f"s_cbranch_scc1 {N}_JD")
    k(f"s_branch {N}_done")

    k(f"{N}_JE:")
    mk_srd(k, 4, 16, S * D * 2)
    k("v_and_b32 v2, 3, v1")
    k("v_lshrrev_b32 v3, 2, v1")
    k("s_lshl_b32 s37, s36, 2")
    k("v_add_u32 v4, s37, v2")
    k("s_movk_i32 s38, 1280")
    k("v_mul_lo_u32 v5, v4, s38")
    k("v_lshl_add_u32 v5, v3, 4, v5")
    for i in range(5):
        k(f"buffer_load_dwordx4 v[{16+4*i}:{19+4*i}], v5, s[4:7], 0 offen offset:{256*i}")
    k("v_lshrrev_b32 v6, 4, v4")
    k("s_movk_i32 s38, 20480")
    k("v_mul_lo_u32 v6, v6, s38")
    k("v_lshrrev_b32 v7, 2, v3")
    k("v_lshl_add_u32 v6, v7, 10, v6")
    k("v_and_b32 v7, 3, v3")
    k("v_lshlrev_b32 v7, 4, v7")
    k("v_and_b32 v8, 15, v4")
    k("v_add_u32 v7, v7, v8")
    k("v_lshl_add_u32 v6, v7, 4, v6")
    k("v_mov_b32 v10, 0")
    k("v_mov_b32 v11, 0")
    k("s_waitcnt vmcnt(0)")
    for i in range(20):
        k(f"v_lshlrev_b32 v{40+2*i}, 16, v{16+i}")
        k(f"v_and_b32 v{41+2*i}, 0xffff0000, v{16+i}")
    for i in range(20):
        k(f"v_pk_add_f32 v[10:11], v[10:11], v[{40+2*i}:{41+2*i}]")
    k("v_add_f32 v10, v10, v11")
    def red(v):
        k("s_nop 1")
        k(f"v_add_f32_dpp v{v}, v{v}, v{v} row_ror:4 row_mask:0xf bank_mask:0xf")
        k("s_nop 1")
        k(f"v_add_f32_dpp v{v}, v{v}, v{v} row_ror:8 row_mask:0xf bank_mask:0xf")
        allreduce_rows(k, v, 12)
    red(10)
    k(f"v_mul_f32 v10, {-1.0/640!r}, v10")
    k("v_mov_b32 v14, 0")
    k("v_mov_b32 v15, 0")
    for i in range(20):
        k(f"v_pk_add_f32 v[{40+2*i}:{41+2*i}], v[{40+2*i}:{41+2*i}], v[10:11] op_sel_hi:[1,0]")
    for i in range(20):
        k(f"v_pk_fma_f32 v[14:15], v[{40+2*i}:{41+2*i}], v[{40+2*i}:{41+2*i}], v[14:15]")
    k("v_add_f32 v14, v14, v15")
    red(14)
    k(f"v_mul_f32 v14, {1.0/640!r}, v14")
    k("v_add_f32 v14, 1e-5, v14")
    k("v_rsq_f32 v14, v14")
    k("s_nop 1")
    for i in range(20):
        k(f"v_pk_mul_f32 v[{40+2*i}:{41+2*i}], v[{40+2*i}:{41+2*i}], v[14:15] op_sel_hi:[1,0]")
    for i in range(20):
        k(f"v_cvt_pk_bf16_f32 v{16+i}, v{40+2*i}, v{41+2*i}")
    for i in range(5):
        k(f"s_mov_b32 s38, {WS_XN + 4096*i}")
        k(f"buffer_store_dwordx4 v[{16+4*i}:{19+4*i}], v6, s[8:11], s38 offen")
    k(f"s_branch {N}_done")

    k(f"{N}_JA:")
    mk_srd(k, 4, 18, D * 3 * D * 2)
    k(f"s_mov_b32 s38, {udiv_magic(20, 400)}")
    k("s_mul_hi_u32 s37, s36, s38")
    k("s_mul_i32 s38, s37, 20")
    k("s_sub_u32 s38, s36, s38")
    k("v_and_b32 v2, 15, v1")
    k("v_lshrrev_b32 v3, 4, v1")
    k("s_lshl_b32 s39, s38, 5")
    k("v_lshl_add_u32 v4, v3, 3, s39")
    k("s_movk_i32 s39, 3840")
    k("v_mul_lo_u32 v4, v4, s39")
    k("s_mul_i32 s39, s37, 80")
    k("v_add_u32 v4, s39, v4")
    k("v_and_b32 v5, 3, v2")
    k("v_lshl_add_u32 v4, v5, 2, v4")
    k("v_lshrrev_b32 v5, 2, v2")
    for j in range(1, 8):
        k(f"s_movk_i32 s{40+j}, {3840*j}")
    k("s_mov_b32 s40, 0")
    for w in range(4):
        k(f"v_add_u32 v6, {4*w}, v5")
        k("v_mul_u32_u24 v7, 52, v6")
        k("v_lshrrev_b32 v7, 8, v7")
        k("v_mul_u32_u24 v8, 5, v7")
        k("v_sub_u32 v8, v6, v8")
        k("v_mul_u32_u24 v7, 0x500, v7")
        k("v_lshl_add_u32 v7, v8, 4, v7")
        k(f"v_add_u32 v{10+w}, v4, v7")
        if w == 3:
            k("v_mov_b32 v7, 0x80000000")
            k("v_cmp_eq_u32 vcc, 15, v6")
            k("s_nop 1")
            k("v_cndmask_b32 v13, v13, v7, vcc")
        for j in range(8):
            k(f"buffer_load_dword v{16+8*w+j}, v{10+w}, s[4:7], s{40+j} offen")
    k("s_lshl_b32 s39, s36, 13")
    k(f"s_add_u32 s39, s39, {WS_W1P}")
    k("v_lshlrev_b32 v9, 4, v1")
    k("s_mov_b32 s48, 0x05040100")
    k("s_mov_b32 s49, 0x07060302")
    for w in range(4):
        k(f"s_waitcnt vmcnt({8*(3-w) + 2*w})")
        b = 16 + 8*w
        for m in range(4):
            k(f"v_perm_b32 v{48+8*w+m}, v{b+2*m+1}, v{b+2*m}, s48")
            k(f"v_perm_b32 v{52+8*w+m}, v{b+2*m+1}, v{b+2*m}, s49")
        k(f"buffer_store_dwordx4 v[{48+8*w}:{51+8*w}], v9, s[8:11], s39 offen offset:{(2*w)%4*1024}" if (2*w) % 4 + 0 < 4 else "")
        k(f"buffer_store_dwordx4 v[{52+8*w}:{55+8*w}], v9, s[8:11], s39 offen offset:{((2*w)%4+1)*1024}")
        if w == 1:
            k("s_add_u32 s39, s39, 4096")
    k(f"s_branch {N}_done")

    k(f"{N}_JB:")
    k(f"s_mov_b32 s38, {udiv_magic(135, 300)}")
    k("s_mul_hi_u32 s37, s36, s38")
    k("s_mul_i32 s38, s37, 135")
    k("s_sub_u32 s38, s36, s38")
    k(f"s_mov_b32 s39, {udiv_magic(5, 200)}")
    k("s_mul_hi_u32 s39, s38, s39")
    k("s_mul_i32 s40, s39, 5")
    k("s_sub_u32 s40, s38, s40")
    k("s_cmp_eq_u32 s37, 0")
    k("s_cselect_b32 s4, s24, s26")
    k("s_cselect_b32 s5, s25, s27")
    k(f"s_mov_b32 s6, {D*F*2}")
    k("s_mov_b32 s7, 0x00020000")
    k("v_and_b32 v2, 15, v1")
    k("v_lshrrev_b32 v3, 4, v1")
    k("s_lshl_b32 s41, s40, 7")
    k("v_lshl_add_u32 v4, v3, 3, s41")
    k("s_movk_i32 s41, 3456")
    k("v_mul_lo_u32 v4, v4, s41")
    k("s_lshl_b32 s41, s39, 7")
    k("v_add_u32 v4, s41, v4")
    k("v_lshl_add_u32 v4, v2, 3, v4")
    for p in range(4):
        for j in range(8):
            k(f"s_mov_b32 s41, {(32*p + j)*3456}")
            b = 16 + 16*p + 2*j
            k(f"buffer_load_dwordx2 v[{b}:{b+1}], v4, s[4:7], s41 offen")
    k("v_lshrrev_b32 v5, 1, v3")
    k("v_lshlrev_b32 v5, 10, v5")
    k("v_and_b32 v6, 1, v3")
    k("v_lshl_add_u32 v5, v6, 9, v5")
    k("v_lshl_add_u32 v5, v2, 4, v5")
    k("s_lshl_b32 s41, s37, 8")
    k("v_add_u32 v5, s41, v5")
    k(f"s_mul_i32 s42, s39, {4*40960}")
    k("s_lshl_b32 s43, s40, 13")
    k("s_add_u32 s42, s42, s43")
    k(f"s_add_u32 s42, s42, {WS_WGU}")
    k("s_mov_b32 s48, 0x05040100")
    k("s_mov_b32 s49, 0x07060302")
    k("s_mov_b32 s50, 0x3f803f80")
    for c in range(4): k(f"v_mov_b32 v{8+c}, 0")
    nst = 0
    for p in range(4):
        k(f"s_waitcnt vmcnt({8*(3-p) + 4*p})")
        b = 16 + 16*p
        for c in range(4):
            o = 80 + 4*(c + 4*(p % 2))
            for m in range(4):
                sel = 's48' if c % 2 == 0 else 's49'
                k(f"v_perm_b32 v{o+m}, v{b+4*m+2+(c>>1)}, v{b+4*m+(c>>1)}, {sel}")
            for m in range(4):
                k(f"v_dot2c_f32_bf16 v{8+c}, s50, v{o+m}")
            k(f"s_add_u32 s43, s42, {c*40960 + p*2048}")
            k(f"buffer_store_dwordx4 v[{o}:{o+3}], v5, s[8:11], s43 offen")
    k("s_nop 2")
    for c in range(4):
        allreduce_rows(k, 8+c, 12)
    k("s_mul_i32 s43, s40, 108")
    k("s_lshl_b32 s44, s39, 2")
    k("s_add_u32 s43, s43, s44")
    k("s_lshl_b32 s43, s43, 7")
    k("s_lshl_b32 s44, s37, 6")
    k("s_add_u32 s43, s43, s44")
    k(f"s_add_u32 s43, s43, {WS_CSP}")
    k("v_lshlrev_b32 v6, 2, v2")
    k("v_cmp_gt_u32 vcc, 16, v1")
    k("s_and_saveexec_b64 s[44:45], vcc")
    for c in range(4):
        k(f"buffer_store_dword v{8+c}, v6, s[8:11], s43 offen offset:{128*c}")
    k("s_mov_b64 exec, s[44:45]")
    k(f"s_branch {N}_done")

    def nat(tag, ptr, nbytes, nks, wsoff, rowfn_code):
        k(f"{N}_{tag}:")
        mk_srd(k, 4, ptr, nbytes)
        k(f"s_mov_b32 s38, {udiv_magic(nks, 600)}")
        k("s_mul_hi_u32 s37, s36, s38")
        k(f"s_mul_i32 s38, s37, {nks}")
        k("s_sub_u32 s38, s36, s38")
        k("s_lshl_b32 s39, s37, 7")
        k("v_lshl_add_u32 v4, v1, 1, s39")
        for q in range(4):
            rowfn_code(q)
        k("v_lshrrev_b32 v5, 4, v1")
        k("s_lshl_b32 s39, s37, 2")
        k("v_add_u32 v5, s39, v5")
        k("v_mul_u32_u24 v6, 52, v5")
        k("v_lshrrev_b32 v6, 8, v6")
        k("v_mul_u32_u24 v7, 5, v6")
        k("v_sub_u32 v7, v5, v7")
        k(f"v_mul_u32_u24 v6, {nks*5}, v6")
        k("v_add_u32 v6, v6, v7")
        k("v_lshlrev_b32 v6, 10, v6")
        k("v_and_b32 v7, 15, v1")
        k("v_lshl_add_u32 v6, v7, 4, v6")
        k("s_mul_i32 s39, s38, 5120")
        k(f"s_add_u32 s39, s39, {wsoff}")
        for q in range(4):
            k(f"s_waitcnt vmcnt({8*(3-q) + q})")
            b = 16 + 8*q
            for m in range(4):
                k(f"v_lshl_or_b32 v{48+4*q+m}, v{b+2*m+1}, 16, v{b+2*m}")
            k(f"buffer_store_dwordx4 v[{48+4*q}:{51+4*q}], v6, s[8:11], s39 offen offset:{256*q}")
        k(f"s_branch {N}_done")
    def row_wd(q):
        k(f"s_lshl_b32 s40, s38, 1")
        if q >> 1: k("s_add_u32 s40, s40, 1")
        k("s_lshr_b32 s41, s40, 2")
        k("s_lshl_b32 s41, s41, 6")
        k("s_and_b32 s40, s40, 3")
        k("s_add_u32 s40, s40, s41")
        k("s_mul_i32 s40, s40, 1280")
        for j in range(8):
            d = 4*(8*(j >> 2) + 4*(q & 1) + (j & 3)) * 1280
            k(f"s_add_u32 s41, s40, {d}")
            k(f"buffer_load_ushort v{16+8*q+j}, v4, s[4:7], s41 offen")
    def row_wo(q):
        k("s_mul_i32 s40, s38, 40960")
        for j in range(8):
            k(f"s_add_u32 s41, s40, {(8*q+j)*1280}")
            k(f"buffer_load_ushort v{16+8*q+j}, v4, s[4:7], s41 offen")
    nat('JC', 28, F*D*2, 54, WS_WDP, row_wd)
    nat('JD', 20, D*D*2, 20, WS_WOP, row_wo)
    k(f"{N}_done:")

def k_prep(name="prep_kernel"):
    k = Kern(name)
    k("s_cmp_ge_u32 s2, 256")
    k(f"s_cbranch_scc1 {name}_end")
    load_args(k)
    k("v_and_b32 v1, 63, v0")
    wave_id(k, 3, 2)
    stamp_init(k); stamp(k, 0)
    k("s_waitcnt lgkmcnt(0)")
    prep_body(k, name)
    stamp(k, 6)
    k("s_waitcnt vmcnt(0)")
    stamp(k, 7)
    stamp_flush(k, 0)
    k(f"{name}_end:")
    return k.text(128, 102)
```

```python
import sys, os
from gen_common import *
from gen_prep import allreduce_rows
from asmlib import assemble

FL = 0x2400000
FL_EPOCH = FL
FL_0A = FL + 0x1000
FL_0B = FL + 0x60000
FL_1  = FL + 0x12000
FL_2  = FL + 0x1A000
FL_3  = FL + 0x22000
FL_0W = FL + 0x30000
FL_0D = FL + 0x70000
FL_0O = FL + 0x50000
WS_XS = 0x0000000
SC = 'sc1'
SPIN_MAX = 200000
SLEEP = int(os.environ.get('SLEEP', '4'))
RB, CC, RB64, CG, TAG = 56, 57, 58, 59, 60
ROW = 240
XSLOT = 18432; NXS = 5; WRING = NXS*XSLOT; WSLOT = 8192; NWS = 8
STAB = WRING + NWS*WSLOT
HSLOT = 20480; NHS = 7; GU_CS = NHS*HSLOT
RED = 3*HSLOT
WOL = 3*HSLOT
LDS_BYTES = 163840

STN = {'A-waves': {}, 'B-waves': {}}
STMODE = os.environ.get('STMODE', 'all')
P1ONLY = os.environ.get('P1ONLY', '0') == '1'
BUDGET = int(os.environ.get('BUDGET', '7'))
PROLOG = int(os.environ.get('PROLOG', '14'))
NOMFMA = os.environ.get('NOMFMA', '0') == '1'
NOX = os.environ.get('NOX', '0') == '1'
NOW = os.environ.get('NOW', '0') == '1'
def stn(k, grp, name, mode='all'):
    if mode != STMODE and not (name in ('start',)): return
    d = STN['A-waves' if grp == 'A' else 'B-waves']
    if name in d.values():
        idx = [i for i, n in d.items() if n == name][0]
    else:
        idx = len(d); d[idx] = name
    stamp(k, idx)

def set_flag(k, base, sidx):
    k(f"s_lshl_b32 s36, s{sidx}, 2")
    k(f"s_add_u32 s36, s36, {base}")
    k(f"v_mov_b32 v3, s{TAG}")
    k("v_mov_b32 v4, 0")
    k("s_mov_b64 s[38:39], exec")
    k("s_mov_b64 exec, 1")
    k(f"buffer_store_dword v3, v4, s[8:11], s36 offen {SC}")
    k("s_mov_b64 exec, s[38:39]")

def poll(k, voff, name, sleep=False):
    L = k.lab('poll'); Lx = k.lab('pollx')
    k("s_mov_b32 s51, 0")
    k(f"{L}:")
    k(f"buffer_load_dword v3, v{voff}, s[8:11], 0 offen {SC}")
    k("s_add_u32 s51, s51, 1")
    k(f"s_cmp_gt_u32 s51, {SPIN_MAX}")
    k(f"s_cbranch_scc1 {Lx}")
    k("s_waitcnt vmcnt(0)")
    k(f"v_cmp_ne_u32 vcc, s{TAG}, v3")
    k("s_nop 1")
    k(f"s_cbranch_vccz {Lx}")
    k(f"s_sleep {SLEEP}")
    k(f"s_branch {L}")
    k(f"{Lx}:")
    k("s_waitcnt vmcnt(0)")

def poll_wgu(k):
    k("v_min_u32 v4, 59, v1")
    k("v_cmp_le_u32 vcc, 30, v4")
    k("v_mov_b32 v5, 0")
    k("v_mov_b32 v6, 30")
    k("v_cndmask_b32 v5, v5, v6, vcc")
    k("v_sub_u32 v6, v4, v5")
    k("s_lshr_b32 s36, s42, 2")
    k("s_mul_i32 s36, s36, 10")
    k("v_add_u32 v6, s36, v6")
    k("v_min_u32 v6, 0x10d, v6")
    k("v_mul_u32_u24 v5, 9, v5")
    k("v_add_u32 v4, v6, v5")
    k("v_lshlrev_b32 v4, 3, v4")
    k(f"v_add_u32 v4, {FL_0B}, v4")
    poll(k, 4, None)

def poll_wd(k):
    k(f"s_mul_i32 s36, s{CG}, 5")
    k("s_lshr_b32 s36, s36, 2")
    k("s_mul_i32 s36, s36, 54")
    for half in range(2):
        k(f"v_min_u32 v4, {63 if half == 0 else 43}, v1")
        k(f"v_add_u32 v4, {64*half}, v4")
        k("v_add_u32 v4, s36, v4")
        k("v_lshlrev_b32 v4, 3, v4")
        k(f"v_add_u32 v4, {FL_0D}, v4")
        poll(k, 4, None)

def poll_row(k, base):
    k("v_and_b32 v4, 15, v1")
    k(f"s_lshl_b32 s36, s{RB}, 7")
    k(f"s_add_u32 s36, s36, {base}")
    k("v_lshl_add_u32 v4, v4, 2, s36")
    poll(k, 4, None)

def p0_stats(k):
    mk_srd(k, 4, 16, S * D * 2)
    k("v_and_b32 v2, 3, v1")
    k("v_lshrrev_b32 v3, 2, v1")
    k(f"s_lshl_b32 s37, s{RB}, 7")
    k(f"s_lshl_b32 s38, s{CC}, 3")
    k("s_add_u32 s37, s37, s38")
    k("s_lshl_b32 s38, s3, 2")
    k("s_add_u32 s37, s37, s38")
    k("v_add_u32 v4, s37, v2")
    k("s_movk_i32 s38, 1280")
    k("v_mul_lo_u32 v5, v4, s38")
    k("v_lshl_add_u32 v5, v3, 4, v5")
    for i in range(5):
        k(f"buffer_load_dwordx4 v[{16+4*i}:{19+4*i}], v5, s[4:7], 0 offen offset:{256*i}")
    k("v_mov_b32 v10, 0")
    k("v_mov_b32 v11, 0")
    k("s_waitcnt vmcnt(0)")
    for i in range(20):
        k(f"v_lshlrev_b32 v{40+2*i}, 16, v{16+i}")
        k(f"v_and_b32 v{41+2*i}, 0xffff0000, v{16+i}")
    for i in range(20):
        k(f"v_pk_add_f32 v[10:11], v[10:11], v[{40+2*i}:{41+2*i}]")
    k("v_add_f32 v10, v10, v11")
    def red(v):
        k("s_nop 1")
        k(f"v_add_f32_dpp v{v}, v{v}, v{v} row_ror:4 row_mask:0xf bank_mask:0xf")
        k("s_nop 1")
        k(f"v_add_f32_dpp v{v}, v{v}, v{v} row_ror:8 row_mask:0xf bank_mask:0xf")
        allreduce_rows(k, v, 12)
    red(10)
    k(f"v_mul_f32 v10, {-1.0/640!r}, v10")
    k("v_mov_b32 v14, 0")
    k("v_mov_b32 v15, 0")
    for i in range(20):
        k(f"v_pk_add_f32 v[{40+2*i}:{41+2*i}], v[{40+2*i}:{41+2*i}], v[10:11] op_sel_hi:[1,0]")
    for i in range(20):
        k(f"v_pk_fma_f32 v[14:15], v[{40+2*i}:{41+2*i}], v[{40+2*i}:{41+2*i}], v[14:15]")
    k("v_add_f32 v14, v14, v15")
    red(14)
    k(f"v_mul_f32 v14, {1.0/640!r}, v14")
    k("v_add_f32 v14, 1e-5, v14")
    k("v_rsq_f32 v11, v14")
    k("s_nop 0")
    k("v_mul_f32 v10, v10, v11")
    k("v_lshlrev_b32 v6, 3, v4")
    k(f"s_mov_b32 s38, {WS_XS}")
    k("s_mov_b64 exec, 15")
    k(f"buffer_store_dwordx2 v[10:11], v6, s[8:11], s38 offen {SC}")
    k("s_mov_b64 exec, -1")
    k("s_waitcnt vmcnt(0)")
    k(f"s_lshl_b32 s40, s{RB}, 4")
    k(f"s_add_u32 s40, s40, s{CC}")
    k("s_lshl_b32 s40, s40, 1")
    k("s_add_u32 s40, s40, s3")
    set_flag(k, FL_0A, 40)

def a_start(k, N):
    mk_srd(k, 4, 18, D * 3 * D * 2)
    k("v_and_b32 v2, 15, v1")
    k("v_lshrrev_b32 v3, 4, v1")
    k("v_mul_u32_u24 v4, 0x7800, v3")
    k(f"s_mul_i32 s39, s{CC}, 80")
    k("v_add_u32 v4, s39, v4")
    k("v_and_b32 v5, 3, v2")
    k("v_lshl_add_u32 v4, v5, 2, v4")
    k("v_lshrrev_b32 v5, 2, v2")
    for j in range(1, 8):
        k(f"s_movk_i32 s{40+j}, {3840*j}")
    k("s_mov_b32 s40, 0")
    k(f"s_mul_i32 s50, s{RB}, 5")
    k("s_add_u32 s50, s50, s3")
    k("s_cmp_eq_u32 s3, 3")
    k("s_cselect_b32 s36, 1, 0")
    k("s_add_u32 s50, s50, s36")
    k("v_lshlrev_b32 v9, 4, v1")
    def addr(i):
        k(f"s_add_u32 s52, s50, {i}")
        k("s_lshr_b32 s53, s52, 2")
        k("s_and_b32 s54, s52, 3")
        k("s_lshl_b32 s55, s54, 2")
        k("v_add_u32 v6, s55, v5")
        k("v_mul_u32_u24 v7, 52, v6")
        k("v_lshrrev_b32 v7, 8, v7")
        k("v_mul_u32_u24 v8, 5, v7")
        k("v_sub_u32 v8, v6, v8")
        k("v_mul_u32_u24 v7, 0x500, v7")
        k("v_lshl_add_u32 v7, v8, 4, v7")
        k(f"v_add_u32 v{10+i}, v4, v7")
        k(f"s_mul_i32 s55, s53, {32*3840}")
        k(f"v_add_u32 v{10+i}, s55, v{10+i}")
        k("v_mov_b32 v7, 0x80000000")
        k("v_cmp_eq_u32 vcc, 15, v6")
        k(f"s_mul_i32 s55, s{CC}, 20")
        k("s_add_u32 s55, s55, s53")
        k(f"v_cndmask_b32 v{10+i}, v{10+i}, v7, vcc")
        k("s_lshl_b32 s55, s55, 3")
        k("s_lshl_b32 s54, s54, 1")
        k("s_add_u32 s55, s55, s54")
        k("s_lshl_b32 s55, s55, 10")
        k(f"s_add_u32 s{61+i}, s55, {WS_W1P}")
        for j in range(8):
            k(f"buffer_load_dword v{16+8*i+j}, v{10+i}, s[4:7], s{40+j} offen")
    addr(0)
    k("s_cmp_lg_u32 s3, 2")
    k(f"s_cbranch_scc1 {N}_as1")
    addr(1)
    k(f"{N}_as1:")
    k("s_waitcnt vmcnt(0)")
    k("s_mov_b32 s48, 0x05040100")
    k("s_mov_b32 s49, 0x07060302")
    def proc(i):
        b = 16 + 8*i
        for m in range(4):
            k(f"v_perm_b32 v{80+8*i+m}, v{b+2*m+1}, v{b+2*m}, s48")
            k(f"v_perm_b32 v{84+8*i+m}, v{b+2*m+1}, v{b+2*m}, s49")
        k(f"buffer_store_dwordx4 v[{80+8*i}:{83+8*i}], v9, s[8:11], s{61+i} offen {SC}")
        k(f"buffer_store_dwordx4 v[{84+8*i}:{87+8*i}], v9, s[8:11], s{61+i} offen offset:1024 {SC}")
    proc(0)
    k("s_cmp_lg_u32 s3, 2")
    k(f"s_cbranch_scc1 {N}_as4")
    proc(1)
    k(f"{N}_as4:")
    stn(k, 'A', 'W1 stores issued')
    k("s_barrier")
    k("s_waitcnt vmcnt(0) lgkmcnt(0)")
    k(f"s_add_u32 s{TAG}, s{TAG}, 1")
    k(f"s_lshl_b32 s40, s{CC}, 6")
    k(f"s_lshl_b32 s41, s{RB}, 2")
    k("s_add_u32 s40, s40, s41")
    k("s_add_u32 s40, s40, s3")
    k("s_lshl_b32 s40, s40, 1")
    set_flag(k, FL_0W, 40)
    stn(k, 'A', 'W1 flag set')
    a_secondary(k, N)
    stn(k, 'A', 'ready')

def a_secondary(k, N):
    k("s_cmp_ge_u32 s3, 2")
    k(f"s_cbranch_scc1 {N}_as2")
    mk_srd(k, 4, 16, S * D * 2)
    k("v_and_b32 v2, 3, v1")
    k("v_lshrrev_b32 v3, 2, v1")
    k(f"s_lshl_b32 s37, s{RB}, 7")
    k(f"s_lshl_b32 s38, s{CC}, 3")
    k("s_add_u32 s37, s37, s38")
    k("s_lshl_b32 s38, s3, 2")
    k("s_add_u32 s37, s37, s38")
    k("v_add_u32 v33, s37, v2")
    k("s_movk_i32 s38, 1280")
    k("v_mul_lo_u32 v5, v33, s38")
    k("v_lshl_add_u32 v5, v3, 4, v5")
    for i in range(5):
        k(f"buffer_load_dwordx4 v[{48+4*i}:{51+4*i}], v5, s[4:7], 0 offen offset:{256*i}")
    k("v_mov_b32 v10, 0")
    k("v_mov_b32 v11, 0")
    k("s_waitcnt vmcnt(0)")
    for i in range(20):
        k(f"v_lshlrev_b32 v{80+2*i}, 16, v{48+i}")
        k(f"v_and_b32 v{81+2*i}, 0xffff0000, v{48+i}")
    for i in range(20):
        k(f"v_pk_add_f32 v[10:11], v[10:11], v[{80+2*i}:{81+2*i}]")
    k("v_add_f32 v10, v10, v11")
    def red(v):
        k("s_nop 1")
        k(f"v_add_f32_dpp v{v}, v{v}, v{v} row_ror:4 row_mask:0xf bank_mask:0xf")
        k("s_nop 1")
        k(f"v_add_f32_dpp v{v}, v{v}, v{v} row_ror:8 row_mask:0xf bank_mask:0xf")
        allreduce_rows(k, v, 12)
    red(10)
    k(f"v_mul_f32 v10, {-1.0/640!r}, v10")
    k("v_mov_b32 v14, 0")
    k("v_mov_b32 v15, 0")
    for i in range(20):
        k(f"v_pk_add_f32 v[{80+2*i}:{81+2*i}], v[{80+2*i}:{81+2*i}], v[10:11] op_sel_hi:[1,0]")
    for i in range(20):
        k(f"v_pk_fma_f32 v[14:15], v[{80+2*i}:{81+2*i}], v[{80+2*i}:{81+2*i}], v[14:15]")
    k("v_add_f32 v14, v14, v15")
    red(14)
    k(f"v_mul_f32 v14, {1.0/640!r}, v14")
    k("v_add_f32 v14, 1e-5, v14")
    k("v_rsq_f32 v11, v14")
    k("s_nop 0")
    k("v_mul_f32 v10, v10, v11")
    k("v_lshlrev_b32 v6, 3, v33")
    k(f"s_mov_b32 s38, {WS_XS}")
    k("s_mov_b64 exec, 15")
    k(f"buffer_store_dwordx2 v[10:11], v6, s[8:11], s38 offen {SC}")
    k("s_mov_b64 exec, -1")
    k(f"s_branch {N}_as6")
    k(f"{N}_as2:")
    k("s_cmp_ge_u32 s2, 200")
    k(f"s_cbranch_scc1 {N}_as6")
    mk_srd(k, 4, 20, D*D*2)
    k(f"s_mov_b32 s38, {udiv_magic(20, 600)}")
    k("s_mul_hi_u32 s37, s2, s38")
    k("s_mul_i32 s38, s37, 20")
    k("s_sub_u32 s38, s2, s38")
    k("s_lshl_b32 s39, s37, 7")
    k("v_lshl_add_u32 v5, v1, 1, s39")
    k("s_mul_i32 s36, s38, 40960")
    k("s_sub_u32 s39, s3, 2")
    k("s_mul_i32 s39, s39, 20480")
    k("s_add_u32 s36, s36, s39")
    for q in range(2):
        for j in range(8):
            k(f"s_add_u32 s55, s36, {(8*q+j)*1280}")
            k(f"buffer_load_ushort v{48+8*q+j}, v5, s[4:7], s55 offen")
    k("v_lshrrev_b32 v5, 4, v1")
    k("s_lshl_b32 s39, s37, 2")
    k("v_add_u32 v5, s39, v5")
    k("v_mul_u32_u24 v6, 52, v5")
    k("v_lshrrev_b32 v6, 8, v6")
    k("v_mul_u32_u24 v7, 5, v6")
    k("v_sub_u32 v7, v5, v7")
    k("v_mul_u32_u24 v6, 100, v6")
    k("v_add_u32 v6, v6, v7")
    k("v_lshlrev_b32 v6, 10, v6")
    k("v_and_b32 v7, 15, v1")
    k("v_lshl_add_u32 v6, v7, 4, v6")
    k("s_mul_i32 s39, s38, 5120")
    k("s_sub_u32 s38, s3, 2")
    k("s_lshl_b32 s38, s38, 9")
    k("s_add_u32 s39, s39, s38")
    k(f"s_add_u32 s39, s39, {WS_WOP}")
    k("s_waitcnt vmcnt(0)")
    for q in range(2):
        b = 48 + 8*q
        for m in range(4):
            k(f"v_lshl_or_b32 v{80+4*q+m}, v{b+2*m+1}, 16, v{b+2*m}")
        k(f"buffer_store_dwordx4 v[{80+4*q}:{83+4*q}], v6, s[8:11], s39 offen offset:{256*q} {SC}")
    k(f"{N}_as6:")

def a_secondary_flags(k, N):
    k("s_waitcnt vmcnt(0)")
    L = k.lab('sec'); L2 = k.lab('sec'); L3 = k.lab('sec')
    k("s_cmp_ge_u32 s3, 2")
    k(f"s_cbranch_scc1 {L}")
    k(f"s_lshl_b32 s40, s{RB}, 4")
    k(f"s_add_u32 s40, s40, s{CC}")
    k("s_lshl_b32 s40, s40, 1")
    k("s_add_u32 s40, s40, s3")
    k("s_lshl_b32 s36, s40, 3")
    k(f"s_add_u32 s36, s36, {FL_0A}")
    k(f"s_branch {L2}")
    k(f"{L}:")
    k("s_cmp_ge_u32 s2, 200")
    k(f"s_cbranch_scc1 {L3}")
    k("s_lshl_b32 s36, s2, 1")
    k("s_add_u32 s36, s36, s3")
    k("s_sub_u32 s36, s36, 2")
    k("s_lshl_b32 s36, s36, 3")
    k(f"s_add_u32 s36, s36, {FL_0O}")
    k(f"{L2}:")
    k(f"v_mov_b32 v3, s{TAG}")
    k("v_mov_b32 v9, 0")
    k("s_mov_b64 exec, 1")
    k(f"buffer_store_dword v3, v9, s[8:11], s36 offen {SC}")
    k("s_mov_b64 exec, -1")
    k(f"{L3}:")

NGUJ = 540
def gu_issue(k, N):
    k("s_lshr_b32 s36, s63, 2")
    k("s_add_u32 s36, s36, s2")
    k("s_mov_b32 s61, s36")
    k(f"s_mov_b32 s38, {udiv_magic(270, 1100)}")
    k("s_mul_hi_u32 s37, s36, s38")
    k("s_mul_i32 s38, s37, 270")
    k("s_sub_u32 s38, s36, s38")
    k(f"s_mov_b32 s39, {udiv_magic(10, 300)}")
    k("s_mul_hi_u32 s39, s38, s39")
    k("s_mul_i32 s40, s39, 10")
    k("s_sub_u32 s40, s38, s40")
    k("s_cmp_eq_u32 s37, 0")
    k("s_cselect_b32 s4, s24, s26")
    k("s_cselect_b32 s5, s25, s27")
    k(f"s_mov_b32 s6, {D*F*2}")
    k("s_mov_b32 s7, 0x00020000")
    k("v_and_b32 v2, 15, v1")
    k("v_lshrrev_b32 v3, 4, v1")
    k("s_lshl_b32 s41, s40, 6")
    k("v_lshl_add_u32 v4, v3, 3, s41")
    k("s_movk_i32 s41, 3456")
    k("v_mul_lo_u32 v4, v4, s41")
    k("s_lshl_b32 s41, s39, 7")
    k("v_add_u32 v4, s41, v4")
    k("v_lshl_add_u32 v4, v2, 3, v4")
    k("v_mov_b32 v5, 0x80000000")
    k(f"s_cmp_ge_u32 s36, {NGUJ}")
    k("s_cselect_b64 vcc, -1, 0")
    k("s_mov_b32 s44, s37\ns_mov_b32 s46, s39\ns_mov_b32 s47, s40")
    k("v_cndmask_b32 v4, v4, v5, vcc")
    for p in range(2):
        for j in range(8):
            k(f"s_mov_b32 s41, {(32*p + j)*3456}")
            b = 16 + 16*p + 2*j
            k(f"buffer_load_dwordx2 v[{b}:{b+1}], v4, s[4:7], s41 offen")
    return 16

def gu_process(k, N):
    k("v_and_b32 v2, 15, v1")
    k("v_lshrrev_b32 v3, 4, v1")
    k("v_lshrrev_b32 v5, 1, v3")
    k("v_lshlrev_b32 v5, 10, v5")
    k("v_and_b32 v6, 1, v3")
    k("v_lshl_add_u32 v5, v6, 9, v5")
    k("v_lshl_add_u32 v5, v2, 4, v5")
    k("s_lshl_b32 s41, s44, 8")
    k("v_add_u32 v5, s41, v5")
    k(f"s_mul_i32 s42, s46, {4*40960}")
    k("s_lshl_b32 s43, s47, 12")
    k("s_add_u32 s42, s42, s43")
    k(f"s_add_u32 s42, s42, {WS_WGU}")
    k("v_mov_b32 v7, 0x80000000")
    k(f"s_cmp_ge_u32 s61, {NGUJ}")
    k("s_cselect_b64 vcc, -1, 0")
    k("s_cselect_b32 s42, 0, s42")
    k("s_mov_b32 s48, 0x05040100")
    k("s_mov_b32 s49, 0x07060302")
    k("s_mov_b32 s50, 0x3f803f80")
    k("v_cndmask_b32 v5, v5, v7, vcc")
    k("v_lshlrev_b32 v6, 2, v2")
    k("v_cndmask_b32 v6, v6, v7, vcc")
    for c in range(4): k(f"v_mov_b32 v{8+c}, 0")
    for p in range(2):
        b = 16 + 16*p
        for c in range(4):
            o = 80 + 4*c + 16*p
            for m in range(4):
                sel = 's48' if c % 2 == 0 else 's49'
                k(f"v_perm_b32 v{o+m}, v{b+4*m+2+(c>>1)}, v{b+4*m+(c>>1)}, {sel}")
        for c in range(4):
            o = 80 + 4*c + 16*p
            k(f"s_add_u32 s43, s42, {c*40960 + p*2048}")
            k(f"buffer_store_dwordx4 v[{o}:{o+3}], v5, s[8:11], s43 offen {SC}")
    for p in range(2):
        for m in range(4):
            for c in range(4):
                o = 80 + 4*c + 16*p
                k(f"v_dot2c_f32_bf16 v{8+c}, s50, v{o+m}")
    k("s_nop 2")
    for c in range(4):
        allreduce_rows(k, 8+c, 12)
    k("s_mul_i32 s43, s47, 108")
    k("s_lshl_b32 s48, s46, 2")
    k("s_add_u32 s43, s43, s48")
    k("s_lshl_b32 s43, s43, 7")
    k("s_lshl_b32 s48, s44, 6")
    k("s_add_u32 s43, s43, s48")
    k(f"s_add_u32 s43, s43, {WS_CSP}")
    k(f"s_cmp_ge_u32 s61, {NGUJ}")
    k("s_cselect_b32 s43, 0, s43")
    k("s_mov_b64 exec, 0xffff")
    for c in range(4):
        k(f"buffer_store_dword v{8+c}, v6, s[8:11], s43 offen offset:{128*c} {SC}")
    k("s_mov_b64 exec, -1")
    return 12

def job_flag(k, base, sj, njobs):
    k(f"s_lshl_b32 s36, s{sj}, 3")
    k(f"s_add_u32 s36, s36, {base}")
    k(f"s_cmp_ge_u32 s{sj}, {njobs}")
    k("s_cselect_b32 s38, 0x80000000, 0")
    k("s_cselect_b32 s36, 0, s36")
    k("v_mov_b32 v9, s38")
    k(f"v_mov_b32 v3, s{TAG}")
    k("s_mov_b64 exec, 1")
    k(f"buffer_store_dword v3, v9, s[8:11], s36 offen {SC}")
    k("s_mov_b64 exec, -1")

NWDJ = 540
def wd_issue(k):
    k("s_sub_u32 s36, s3, 4")
    k("s_lshl_b32 s36, s36, 8")
    k("s_add_u32 s36, s36, s2")
    k("s_mov_b32 s61, s36")
    mk_srd(k, 4, 28, F*D*2)
    k(f"s_mov_b32 s38, {udiv_magic(54, 1100)}")
    k("s_mul_hi_u32 s37, s36, s38")
    k("s_mul_i32 s38, s37, 54")
    k("s_sub_u32 s38, s36, s38")
    k("s_mov_b32 s62, s37\ns_mov_b32 s63, s38")
    k("s_lshl_b32 s39, s37, 7")
    k("v_lshl_add_u32 v4, v1, 1, s39")
    k("v_mov_b32 v5, 0x80000000")
    k(f"s_cmp_ge_u32 s36, {NWDJ}")
    k("s_cselect_b64 vcc, -1, 0")
    k("s_cselect_b32 s38, 0, s38")
    k("s_nop 0")
    k("v_cndmask_b32 v4, v4, v5, vcc")
    for q in range(4):
        k(f"s_lshl_b32 s40, s38, 1")
        if q >> 1: k("s_add_u32 s40, s40, 1")
        k("s_lshr_b32 s41, s40, 2")
        k("s_lshl_b32 s41, s41, 6")
        k("s_and_b32 s40, s40, 3")
        k("s_add_u32 s40, s40, s41")
        k("s_mul_i32 s40, s40, 1280")
        for j in range(8):
            d = 4*(8*(j >> 2) + 4*(q & 1) + (j & 3)) * 1280
            k(f"s_add_u32 s41, s40, {d}")
            k(f"buffer_load_ushort v{16+8*q+j}, v4, s[4:7], s41 offen")
    return 32

def wd_process(k):
    k("v_lshrrev_b32 v5, 4, v1")
    k("s_lshl_b32 s39, s62, 2")
    k("v_add_u32 v5, s39, v5")
    k("v_mul_u32_u24 v6, 52, v5")
    k("v_lshrrev_b32 v6, 8, v6")
    k("v_mul_u32_u24 v7, 5, v6")
    k("v_sub_u32 v7, v5, v7")
    k("v_mul_u32_u24 v6, 0x10e, v6")
    k("v_add_u32 v6, v6, v7")
    k("v_lshlrev_b32 v6, 10, v6")
    k("v_and_b32 v7, 15, v1")
    k("v_lshl_add_u32 v6, v7, 4, v6")
    k("s_mul_i32 s39, s63, 5120")
    k(f"s_add_u32 s39, s39, {WS_WDP}")
    k("v_mov_b32 v7, 0x80000000")
    k(f"s_cmp_ge_u32 s61, {NWDJ}")
    k("s_cselect_b64 vcc, -1, 0")
    k("s_cselect_b32 s39, 0, s39")
    k("s_nop 0")
    k("v_cndmask_b32 v6, v6, v7, vcc")
    for q in range(4):
        b = 16 + 8*q
        for m in range(4):
            k(f"v_lshl_or_b32 v{48+4*q+m}, v{b+2*m+1}, 16, v{b+2*m}")
        k(f"buffer_store_dwordx4 v[{48+4*q}:{51+4*q}], v6, s[8:11], s39 offen offset:{256*q} {SC}")
    return 4

def p1_compute(k, N):
    ACC = 32; XF = 104
    k("v_and_b32 v9, 15, v1")
    k("v_lshrrev_b32 v10, 4, v1")
    k("v_and_b32 v11, 7, v9")
    k("v_xor_b32 v12, v10, v11")
    k("v_lshlrev_b32 v12, 4, v12")
    k("v_lshl_add_u32 v4, v9, 7, v12")
    k("v_xor_b32 v5, 64, v4")
    k(f"v_add_u32 v6, {3*XSLOT}, v4")
    k(f"v_add_u32 v7, {3*XSLOT}, v5")
    k("s_lshl_b32 s42, s3, 11")
    k(f"s_add_u32 s42, s42, {WRING}")
    k("v_lshl_add_u32 v8, v1, 4, s42")
    for i in range(72): k(f"v_mov_b32 v{ACC+i}, 0")
    Lo = k.lab('ones')
    k("s_cmp_lg_u32 s3, 2")
    k(f"s_cbranch_scc1 {Lo}")
    k("v_lshlrev_b32 v12, 4, v1")
    for i in range(4): k(f"v_mov_b32 v{104+i}, 0x3f803f80")
    k("s_mov_b64 exec, 0xff")
    for sl in range(NXS):
        if sl*XSLOT < 65536:
            k(f"ds_write_b128 v12, v[104:107] offset:{sl*XSLOT}")
        else:
            k(f"v_add_u32 v13, {sl*XSLOT}, v12")
            k(f"ds_write_b128 v13, v[104:107]")
    k("s_mov_b64 exec, -1")
    k("s_waitcnt lgkmcnt(0)")
    k(f"{Lo}:")
    lq = Queue(k, 'lgkmcnt', 15)
    def rd_x(ks, tb):
        j, p = ks >> 1, ks & 1
        sl = j % NXS
        b = (4, 5)[p] if sl < 3 else (6, 7)[p]
        o = (sl % 3)*XSLOT + tb*2048
        r = XF + 4*((ks*9 + tb) % 4)
        k(f"ds_read_b128 v[{r}:{r+3}], v{b} offset:{o}")
        lq.issue(('x', ks, tb))
    def rd_w(ks):
        o = (ks % NWS)*WSLOT
        r = 8*(ks % 2)
        for cb in range(2):
            k(f"ds_read_b128 a[{r+4*cb}:{r+4*cb+3}], v8 offset:{o + cb*1024}")
            lq.issue(('w', ks, cb))
    k("s_barrier")
    stn(k, 'A', 'P1 B(-1)'); stn(k, 'A', 'P1 B(-1)', 'p1')
    rd_w(0); rd_x(0, 0); rd_x(0, 1); rd_x(0, 2)
    for ks in range(20):
        for tb in range(9):
            n = ks*9 + tb + 3
            nks, ntb = n // 9, n % 9
            if nks < 20:
                if ntb == 0: rd_w(nks)
                rd_x(nks, ntb)
            lq.wait(('x', ks, tb))
            x = XF + 4*((ks*9 + tb) % 4)
            w = 8*(ks % 2)
            a0 = ACC + tb*4; a1 = ACC + (9+tb)*4
            if not NOMFMA:
                k(f"v_mfma_f32_16x16x32_bf16 v[{a0}:{a0+3}], a[{w}:{w+3}], v[{x}:{x+3}], v[{a0}:{a0+3}]")
                k(f"v_mfma_f32_16x16x32_bf16 v[{a1}:{a1+3}], a[{w+4}:{w+7}], v[{x}:{x+3}], v[{a1}:{a1+3}]")
        if ks == 2: a_secondary_flags(k, N)
        if ks < 19:
            k("s_barrier")
        if ks in (0, 1, 2, 3, 5, 7, 9, 10, 11, 13, 15, 17, 19): stn(k, 'A', f'ks {ks} done', 'p1')
    k("s_barrier")
    if P1ONLY:
        stn(k, 'A', 'K end', 'p1'); stamp_flush(k, 0); k("s_endpgm")
    stn(k, 'A', 'P1 K end')
    k("v_and_b32 v9, 15, v1")
    k("v_lshrrev_b32 v10, 4, v1")
    k(f"v_lshlrev_b32 v11, 3, v9")
    k(f"v_add_u32 v11, {STAB}, v11")
    for tb in range(9):
        k(f"ds_read_b64 v[{12+2*tb}:{13+2*tb}], v11 offset:{tb*128}")
    k("s_nop 4")
    for cb in range(2):
        for i in range(4):
            k(f"v_mov_b32_dpp v{104+4*cb+i}, v{ACC+cb*36+i} row_newbcast:0 row_mask:0xf bank_mask:0xf")
    k("s_lshl_b32 s42, s3, 2")
    k("v_add_u32 v30, s42, v10")
    k(f"v_mul_u32_u24 v31, {ROW}, v9")
    k("v_lshl_add_u32 v113, v30, 4, v31")
    k(f"v_mov_b32 v115, {144*ROW + 64}")
    k("v_lshl_add_u32 v115, v9, 4, v115")
    k("v_cmp_eq_u32 vcc, 15, v30")
    k(f"v_mov_b32 v116, {16*ROW}")
    k("v_mov_b32 v117, 0")
    k("v_cndmask_b32 v113, v113, v115, vcc")
    k("v_cndmask_b32 v116, v116, v117, vcc")
    k("s_waitcnt lgkmcnt(0)")
    for tb in range(9):
        m = 12 + 2*tb
        for cb in range(2):
            a = ACC + (cb*9+tb)*4
            cs = 104 + 4*cb
            t = 118 + 4*cb
            k(f"v_pk_mul_f32 v[{t}:{t+1}], v[{cs}:{cs+1}], v[{m}:{m+1}] op_sel_hi:[1,0]")
            k(f"v_pk_mul_f32 v[{t+2}:{t+3}], v[{cs+2}:{cs+3}], v[{m}:{m+1}] op_sel_hi:[1,0]")
            k(f"v_pk_fma_f32 v[{t}:{t+1}], v[{a}:{a+1}], v[{m}:{m+1}], v[{t}:{t+1}] op_sel:[0,1,0] op_sel_hi:[1,1,1]")
            k(f"v_pk_fma_f32 v[{t+2}:{t+3}], v[{a+2}:{a+3}], v[{m}:{m+1}], v[{t+2}:{t+3}] op_sel:[0,1,0] op_sel_hi:[1,1,1]")
        r = 2 + 0
        o = 4 if tb % 2 == 0 else 4
        for i in range(4):
            k(f"v_cvt_pk_bf16_f32 v{4+i}, v{118+i}, v{122+i}")
        k(f"ds_write_b128 v113, v[4:7]")
        if tb < 8:
            k("v_add_u32 v113, v113, v116")
    k("s_waitcnt lgkmcnt(0)")
    k("s_barrier")
    stn(k, 'A', 'qkv in LDS')
    k("v_and_b32 v9, 31, v1")
    k("s_lshl_b32 s42, s3, 5")
    k("v_add_u32 v9, s42, v9")
    k("v_lshrrev_b32 v10, 5, v1")
    k(f"v_add_u32 v11, 16, v9")
    k(f"v_mul_u32_u24 v11, {ROW}, v11")
    k("v_mul_u32_u24 v12, 48, v10")
    k("v_add_u32 v12, v11, v12")
    k("v_lshlrev_b32 v13, 3, v10")
    k("v_add_u32 v13, v11, v13")
    Q = 16; KV = 28; KV2 = 40; LG = 52; O = 64; P2 = 60
    k(f"ds_read_b128 v[{Q}:{Q+3}], v12")
    k(f"ds_read_b128 v[{Q+4}:{Q+7}], v12 offset:16")
    k(f"ds_read_b64 v[{Q+8}:{Q+9}], v13 offset:32")
    k(f"s_lshl_b32 s42, s{RB}, 7")
    k("v_add_u32 v14, s42, v9")
    k(f"v_mov_b32 v15, v12")
    k(f"v_mov_b32 v26, v13")
    def rd_row(dst, seg, j):
        off = (14 - 2*j)*ROW + seg
        k(f"ds_read_b128 v[{dst}:{dst+3}], v15 offset:{off}")
        k(f"ds_read_b128 v[{dst+4}:{dst+7}], v15 offset:{off+16}")
        k(f"ds_read_b64 v[{dst+8}:{dst+9}], v26 offset:{off+32}")
    k(f"v_subrev_u32 v15, {14*ROW}, v15")
    k(f"v_subrev_u32 v26, {14*ROW}, v26")
    rd_row(KV, 80, 0)
    for j in range(8):
        cur = KV if j % 2 == 0 else KV2
        nxt = KV2 if j % 2 == 0 else KV
        if j < 7: rd_row(nxt, 80, j+1)
        k(f"s_waitcnt lgkmcnt({3 if j < 7 else 0})")
        k(f"v_mov_b32 v{LG+j}, 0")
        for i in range(10):
            k(f"v_dot2c_f32_bf16 v{LG+j}, v{Q+i}, v{cur+i}")
    rd_row(KV, 160, 0)
    rd_row(KV2, 160, 1)
    c = (20 ** -0.5) * 1.4426950408889634
    k("s_nop 2")
    for j in range(8):
        k(f"v_mul_f32 v{LG+j}, {c!r}, v{LG+j}")
    k("v_mov_b32 v27, -1e9")
    for j in range(1, 8):
        k(f"v_cmp_le_u32 vcc, {2*j}, v14")
        k("s_nop 1")
        k(f"v_cndmask_b32 v{LG+j}, v27, v{LG+j}, vcc")
    k(f"v_max3_f32 v27, v{LG}, v{LG+1}, v{LG+2}")
    k(f"v_max3_f32 v27, v27, v{LG+3}, v{LG+4}")
    k(f"v_max3_f32 v27, v27, v{LG+5}, v{LG+6}")
    k(f"v_max_f32 v27, v27, v{LG+7}")
    for j in range(8):
        k(f"v_sub_f32 v{LG+j}, v{LG+j}, v27")
    for j in range(8):
        k(f"v_exp_f32 v{LG+j}, v{LG+j}")
    k("s_nop 0")
    k(f"v_add_f32 v27, v{LG}, v{LG+1}")
    for j in range(2, 8):
        k(f"v_add_f32 v27, v27, v{LG+j}")
    k("v_rcp_f32 v27, v27")
    k("s_nop 0")
    for j in range(8):
        k(f"v_mul_f32 v{LG+j}, v{LG+j}, v27")
    for jj in range(4):
        k(f"v_cvt_pk_bf16_f32 v{P2+jj}, v{LG+2*jj}, v{LG+2*jj+1}")
    for i in range(20):
        k(f"v_mov_b32 v{O+i}, 0")
    k("s_mov_b32 s42, 0x05040100")
    k("s_mov_b32 s43, 0x07060302")
    VA, VB = KV, KV2
    T0 = 84
    for jj in range(4):
        k("s_waitcnt lgkmcnt(0)")
        for i in range(10):
            k(f"v_perm_b32 v{T0+2*i}, v{VB+i}, v{VA+i}, s42")
            k(f"v_perm_b32 v{T0+2*i+1}, v{VB+i}, v{VA+i}, s43")
        if jj < 3:
            rd_row(VA, 160, 2*jj+2)
            rd_row(VB, 160, 2*jj+3)
        for i in range(20):
            k(f"v_dot2c_f32_bf16 v{O+i}, v{P2+jj}, v{T0+i}")
    k("s_nop 2")
    for i in range(10):
        k(f"v_cvt_pk_bf16_f32 v{Q+i}, v{O+2*i}, v{O+2*i+1}")
    k("v_lshrrev_b32 v28, 4, v14")
    k("s_movk_i32 s42, 20480")
    k("v_mul_lo_u32 v28, v28, s42")
    k("v_and_b32 v29, 15, v14")
    k("v_lshl_add_u32 v28, v29, 4, v28")
    k(f"s_mul_i32 s42, s{CC}, 5")
    def oaddr(dst, ogreg):
        k(f"v_lshrrev_b32 v30, 2, v{ogreg}")
        k(f"v_lshl_add_u32 v{dst}, v30, 10, v28")
        k(f"v_and_b32 v30, 3, v{ogreg}")
        k(f"v_lshl_add_u32 v{dst}, v30, 8, v{dst}")
    k("v_mul_u32_u24 v31, 3, v10")
    k("v_add_u32 v31, s42, v31")
    oaddr(32, 31)
    k("v_add_u32 v31, 1, v31")
    oaddr(33, 31)
    k("s_add_u32 s42, s42, 2")
    k("v_mov_b32 v31, s42")
    oaddr(34, 31)
    k("v_lshl_add_u32 v34, v10, 3, v34")
    k(f"s_mov_b32 s42, {WS_O}")
    k(f"buffer_store_dwordx4 v[{Q}:{Q+3}], v32, s[8:11], s42 offen {SC}")
    k(f"buffer_store_dwordx4 v[{Q+4}:{Q+7}], v33, s[8:11], s42 offen {SC}")
    k(f"buffer_store_dwordx2 v[{Q+8}:{Q+9}], v34, s[8:11], s42 offen {SC}")

def p1_loader(k, N):
    VX, VX0, VW = 120, 121, 122
    mk_srd(k, 12, 16, S*D*2)
    k("s_sub_u32 s63, s3, 4")
    k("v_lshrrev_b32 v2, 3, v1")
    k("v_and_b32 v3, 7, v1")
    k("v_xor_b32 v3, v3, v2")
    k("v_lshlrev_b32 v3, 4, v3")
    k("v_mul_u32_u24 v2, 0x500, v2")
    k(f"v_add_u32 v{VX}, v2, v3")
    k(f"s_lshl_b32 s22, s{RB}, 7")
    k("s_sub_u32 s22, s22, 16")
    k("s_lshl_b32 s36, s63, 3")
    k("s_add_u32 s22, s22, s36")
    k("s_mul_i32 s22, s22, 1280")
    k(f"s_cmp_eq_u32 s{RB}, 0")
    k("s_cselect_b32 s36, 1, 0")
    k("s_cmp_lt_u32 s63, 2")
    k("s_cselect_b32 s36, s36, 0")
    k("s_cmp_eq_u32 s36, 1")
    k("s_cselect_b32 s23, 0, s22")
    k("s_cselect_b32 s36, 0x80000000, 0")
    k(f"v_or_b32 v{VX0}, s36, v{VX}")
    k("s_cmp_eq_u32 s63, 0")
    k("s_cselect_b32 s32, 0xffffff00, -1")
    k("s_mov_b32 s33, -1")
    k(f"v_lshlrev_b32 v{VW}, 4, v1")
    k(f"s_mul_i32 s62, s{CC}, 163840")
    k("s_lshl_b32 s36, s63, 11")
    k("s_add_u32 s62, s62, s36")
    k(f"s_add_u32 s62, s62, {WS_W1P}")
    k("s_lshl_b32 s63, s63, 10")
    k("v_mov_b32 v123, 0x80000000")
    def issue_x(q, j, nx):
        base = (j % NXS)*XSLOT
        for m in range(nx):
            k(f"s_add_u32 m0, s63, {base + m*4096}")
            if NOX:
                k("s_nop 0"); k("buffer_load_dwordx4 v123, s[12:15], 0 offen lds")
            elif m == 0:
                k(f"s_add_u32 s48, s23, {j*128}")
                k("s_mov_b64 exec, s[32:33]")
                k(f"buffer_load_dwordx4 v{VX0}, s[12:15], s48 offen lds")
                k("s_mov_b64 exec, -1")
            else:
                k(f"s_add_u32 s48, s22, {m*32*1280 + j*128}")
                k(f"buffer_load_dwordx4 v{VX}, s[12:15], s48 offen lds")
            q.issue(('x', j, m))
    def issue_w(q, ks):
        base = WRING + (ks % NWS)*WSLOT
        for m in range(2):
            k(f"s_lshl_b32 s49, s63, 1")
            k(f"s_add_u32 m0, s49, {base + m*1024}")
            k(f"s_add_u32 s48, s62, {ks*8192 + m*1024}")
            k(f"buffer_load_dwordx4 v{VW}, s[8:11], s48 offen {SC} lds")
            q.issue(('w', ks, m))
    order_all = []
    for j in range(10):
        order_all += [('x', j), ('w', 2*j), ('w', 2*j+1)]
    order = list(order_all)
    def earliest(g):
        return (2*g[1] - 8) if g[0] == 'x' else (g[1] - 7)
    for var, nx in (('a', 5), ('b', 4)):
        if var == 'a':
            k("s_cmp_ge_u32 s63, 2048")
            k(f"s_cbranch_scc1 {N}_p1ld_b")
        else:
            k(f"{N}_p1ld_b:")
        V = N + var
        q = Queue(k, 'vmcnt', 63)
        pos = [0]
        def issue_upto(it, budget):
            n = 0
            while pos[0] < len(order) and n < budget and earliest(order[pos[0]]) <= it:
                g = order[pos[0]]
                if g[0] == 'x': issue_x(q, g[1], nx); n += nx
                else: issue_w(q, g[1]); n += 2
                pos[0] += 1
        stn(k, 'B', 'setup done', 'p1')
        k("s_barrier")
        issue_x(q, 0, nx)
        ngl = gu_issue(k, V)
        stn(k, 'B', 'x issued'); stn(k, 'B', 'x issued', 'p1')
        k("s_waitcnt lgkmcnt(0)")
        k(f"s_add_u32 s{TAG}, s{TAG}, 1")
        k(f"s_lshl_b32 s36, s{CC}, 9")
        k(f"s_add_u32 s36, s36, {FL_0W}")
        k("v_lshl_add_u32 v5, v1, 3, s36")
        poll(k, 5, None)
        q.q = []
        stn(k, 'B', 'S0 seen'); stn(k, 'B', 'S0 seen', 'p1')
        order[:] = [g for g in order_all if g != ('x', 0)]
        pos[0] = 0
        issue_upto(-1, PROLOG)
        stn(k, 'B', 'prologue issued', 'p1')
        n = gu_process(k, V)
        for j in range(n): q.issue(('gs', j))
        q.wait(('w', 1, 1))
        stn(k, 'B', 'first slots landed'); stn(k, 'B', 'first slots landed', 'p1')
        k("s_barrier")
        for ks in range(19):
            issue_upto(ks, BUDGET)
            if ks == 7:
                q.wait(('gs', 11))
                job_flag(k, FL_0B, 61, NGUJ); q.issue(('gf', 0))
            if ks == 12:
                stats_flag_issue(k, V); q.issue(('sf', 0))
            if ks == 15:
                q.wait(('sf', 0))
                stats_fetch(k, V)
                q.issue(('st', 0)); q.issue(('st', 1)); q.issue(('st', 2))
            if ks == 18:
                q.wait(('st', 2))
                stats_store(k, V)
            if ks + 2 <= 19:
                q.wait(('w', ks + 2, 1))
                q.wait(('x', (ks + 2) >> 1, nx - 1))
            k("s_barrier")
        assert pos[0] == len(order)
        q.drain()
        k("s_waitcnt vmcnt(0) lgkmcnt(0)")
        if var == 'a':
            k(f"s_branch {N}_p1ld_done")
    k(f"{N}_p1ld_done:")
    stn(k, 'B', 'loader done'); stn(k, 'B', 'loader done', 'p1')
    k("s_barrier")
    if P1ONLY:
        stamp_flush(k, 0); k("s_endpgm")

def stats_flag_issue(k, V):
    k("v_and_b32 v4, 31, v1")
    k(f"s_lshl_b32 s36, s{RB}, 5")
    k("v_add_u32 v5, s36, v4")
    k("v_and_b32 v6, 3, v1")
    k("s_sub_u32 s37, s36, 4")
    k(f"s_cmp_eq_u32 s{RB}, 0")
    k("s_cselect_b32 s37, 0, s37")
    k("v_add_u32 v6, s37, v6")
    k("v_cmp_gt_u32 vcc, 32, v1")
    k("s_nop 1")
    k("v_cndmask_b32 v5, v6, v5, vcc")
    k("v_lshlrev_b32 v5, 3, v5")
    k(f"v_add_u32 v103, {FL_0A}, v5")
    k(f"buffer_load_dword v102, v103, s[8:11], 0 offen {SC}")

def stats_fetch(k, V):
    L = k.lab('sfok')
    k(f"v_cmp_ne_u32 vcc, s{TAG}, v102")
    k("s_nop 1")
    k(f"s_cbranch_vccz {L}")
    poll(k, 103, None)
    k(f"{L}:")
    k(f"s_lshl_b32 s36, s{RB}, 7")
    k("s_sub_u32 s36, s36, 16")
    k("v_add_u32 v4, s36, v1")
    k("v_lshlrev_b32 v5, 3, v4")
    k("v_mov_b32 v6, 0x80000000")
    k("v_cmp_gt_i32 vcc, 0, v4")
    k("s_nop 1")
    k("v_cndmask_b32 v5, v5, v6, vcc")
    k(f"s_mov_b32 s36, {WS_XS}")
    k(f"buffer_load_dwordx2 v[96:97], v5, s[8:11], s36 offen {SC}")
    k("v_add_u32 v4, 64, v4")
    k("v_lshlrev_b32 v5, 3, v4")
    k(f"buffer_load_dwordx2 v[98:99], v5, s[8:11], s36 offen {SC}")
    k(f"buffer_load_dwordx2 v[100:101], v5, s[8:11], s36 offen offset:512 {SC}")

def stats_store(k, V):
    L = k.lab('sts')
    k("s_cmp_lg_u32 s3, 4")
    k(f"s_cbranch_scc1 {L}")
    k("v_lshlrev_b32 v5, 3, v1")
    k(f"v_add_u32 v5, {STAB}, v5")
    k("ds_write_b64 v5, v[96:97]")
    k("ds_write_b64 v5, v[98:99] offset:512")
    k("s_mov_b64 exec, 0xffff")
    k("ds_write_b64 v5, v[100:101] offset:1024")
    k("s_mov_b64 exec, -1")
    k(f"{L}:")

def ksplit_gemm(k, N, tag, nks, a_off, a_stride_tb, w_off, depth):
    ACC = 32
    k("s_sub_u32 s49, s3, 4")
    for i in range(80): k(f"v_mov_b32 v{ACC+i}, 0")
    k(f"s_lshl_b32 s42, s{RB64}, 2")
    k(f"s_mul_i32 s44, s42, {a_stride_tb}")
    k(f"s_lshl_b32 s43, s49, 10")
    k(f"s_add_u32 s44, s44, s43")
    k(f"s_add_u32 s44, s44, {a_off}")
    k(f"s_mul_i32 s45, s{CG}, {nks*5120}")
    k(f"s_mul_i32 s43, s49, 5120")
    k(f"s_add_u32 s45, s45, s43")
    k(f"s_add_u32 s45, s45, {w_off}")
    k(f"s_sub_u32 s46, {nks+3}, s49")
    k("s_lshr_b32 s46, s46, 2")
    def issue(st):
        r = 36*st
        for tb in range(4):
            k(f"s_add_u32 s47, s44, {tb*a_stride_tb}")
            k(f"buffer_load_dwordx4 a[{r+4*tb}:{r+4*tb+3}], v2, s[8:11], s47 offen {SC}")
        for cb in range(5):
            if cb < 4:
                k(f"buffer_load_dwordx4 a[{r+16+4*cb}:{r+16+4*cb+3}], v2, s[8:11], s45 offen offset:{1024*cb} {SC}")
            else:
                k(f"s_add_u32 s47, s45, 4096")
                k(f"buffer_load_dwordx4 a[{r+16+4*cb}:{r+16+4*cb+3}], v2, s[8:11], s47 offen {SC}")
        k("s_add_u32 s44, s44, 4096")
        k(f"s_add_u32 s45, s45, {4*5120}")
    def mfmas(st):
        r = 36*st
        for cb in range(5):
            for tb in range(4):
                a = ACC + (tb*5+cb)*4
                k(f"v_mfma_f32_16x16x32_bf16 v[{a}:{a+3}], a[{r+16+4*cb}:{r+16+4*cb+3}], a[{r+4*tb}:{r+4*tb+3}], v[{a}:{a+3}]")
    for st in range(depth):
        issue(st)
    k(f"s_sub_u32 s48, s46, {depth}")
    L = k.lab('kl')
    k(f"{L}:")
    for st in range(depth):
        Lno = k.lab('ni'); Lj = k.lab('nj')
        k("s_cmp_eq_u32 s48, 0")
        k(f"s_cbranch_scc1 {Lno}")
        k(f"s_waitcnt vmcnt({9*(depth-1)})")
        mfmas(st)
        issue(st)
        k("s_sub_u32 s48, s48, 1")
        k(f"s_branch {Lj}")
        k(f"{Lno}:")
        for t in range(depth):
            k(f"s_waitcnt vmcnt({9*(depth-1-t)})")
            mfmas((st + t) % depth)
        k(f"s_branch {N}_{tag}_kdone")
        k(f"{Lj}:")
    k(f"s_branch {L}")
    k(f"{N}_{tag}_kdone:")
    stn(k, 'B', tag + ' K done')

def reduce_scatter(k):
    ACC = 32
    k("s_mul_i32 s42, s49, 20480")
    k(f"s_add_u32 s42, s42, {RED}")
    k("v_add_u32 v3, s42, v2")
    k("s_nop 7")
    for tb in range(4):
        for cb in range(5):
            a = ACC + (tb*5+cb)*4
            k(f"ds_write_b128 v3, v[{a}:{a+3}] offset:{(tb*5+cb)*1024}")
    k("s_waitcnt lgkmcnt(0)")
    k("s_barrier")
    k("s_mul_i32 s42, s49, 5120")
    k(f"s_add_u32 s42, s42, {RED}")
    k("v_add_u32 v3, s42, v2")
    k(f"v_add_u32 v4, {3*20480}, v3")
    for src in range(4):
        for cb in range(5):
            r = 32 + (src*5+cb)*4
            if src < 3:
                k(f"ds_read_b128 v[{r}:{r+3}], v3 offset:{src*20480 + cb*1024}")
            else:
                k(f"ds_read_b128 v[{r}:{r+3}], v4 offset:{cb*1024}")
    k("s_waitcnt lgkmcnt(0)")
    for i in range(20):
        k(f"v_add_f32 v{32+i}, v{32+i}, v{52+i}")
        k(f"v_add_f32 v{72+i}, v{72+i}, v{92+i}")
    for i in range(20):
        k(f"v_add_f32 v{32+i}, v{32+i}, v{72+i}")

def tile_ids(k):
    k("v_lshlrev_b32 v2, 4, v1")
    k("v_and_b32 v5, 15, v1")
    k("v_lshrrev_b32 v6, 4, v1")
    k(f"s_lshl_b32 s42, s{RB64}, 6")
    k("s_sub_u32 s43, s3, 4")
    k("s_lshl_b32 s43, s43, 4")
    k("s_add_u32 s42, s42, s43")
    k("v_add_u32 v7, s42, v5")

def hfrag_addr_setup(k):
    k("v_lshrrev_b32 v21, 4, v7")
    k("s_movk_i32 s42, 20480")
    k("v_mul_lo_u32 v21, v21, s42")
    k("v_lshl_add_u32 v21, v5, 4, v21")
    k("v_and_b32 v22, 1, v6")
    k("v_lshl_add_u32 v21, v22, 3, v21")
    k("v_lshrrev_b32 v22, 1, v6")
    k(f"s_mul_i32 s42, s{CG}, 10")
    k("v_add_u32 v22, s42, v22")

def add_res_round(k):
    for cb in range(5):
        for i in range(2):
            x = 112 + 2*cb + i
            k(f"v_lshlrev_b32 v16, 16, v{x}")
            k(f"v_and_b32 v17, 0xffff0000, v{x}")
            k(f"v_add_f32 v{32+4*cb+2*i}, v{32+4*cb+2*i}, v16")
            k(f"v_add_f32 v{33+4*cb+2*i}, v{33+4*cb+2*i}, v17")
    for cb in range(5):
        for i in range(2):
            k(f"v_cvt_pk_bf16_f32 v{56+2*cb+i}, v{32+4*cb+2*i}, v{33+4*cb+2*i}")

def p2_compute(k, N):
    q = Queue(k, 'vmcnt', 63)
    k("s_sub_u32 s32, s3, 4")
    k(f"s_mul_i32 s36, s{CG}, 5")
    k("s_lshr_b32 s36, s36, 2")
    k("s_mul_i32 s36, s36, 40")
    k("v_min_u32 v2, 0x4f, v1")
    k("v_add_u32 v2, s36, v2")
    k("v_lshlrev_b32 v2, 3, v2")
    k(f"v_add_u32 v5, {FL_0O}, v2")
    k(f"buffer_load_dword v120, v5, s[8:11], 0 offen {SC}")
    k(f"buffer_load_dword v121, v5, s[8:11], 0 offen offset:128 {SC}")
    q.issue(('of', 1)); q.issue(('of', 0))
    k("v_lshlrev_b32 v2, 4, v1")
    k("s_mul_i32 s23, s32, 25600")
    k(f"s_mul_i32 s22, s{CG}, 102400")
    k("s_add_u32 s22, s22, s23")
    k(f"s_add_u32 s22, s22, {WS_WOP}")
    k("s_barrier")
    q.wait(('of', 0))
    Lok = k.lab('wook'); Lre = k.lab('wore')
    k(f"{Lre}:")
    k(f"v_cmp_ne_u32 vcc, s{TAG}, v120")
    k(f"v_cmp_ne_u32 s[36:37], s{TAG}, v121")
    k("s_nop 1")
    k("s_or_b64 vcc, vcc, s[36:37]")
    k(f"s_cbranch_vccz {Lok}")
    k(f"s_sleep {SLEEP}")
    k(f"buffer_load_dword v120, v5, s[8:11], 0 offen {SC}")
    k(f"buffer_load_dword v121, v5, s[8:11], 0 offen offset:128 {SC}")
    k("s_waitcnt vmcnt(0)")
    k(f"s_branch {Lre}")
    k(f"{Lok}:")
    for f in range(25):
        k(f"s_add_u32 m0, s23, {WOL + f*1024}")
        k(f"s_add_u32 s32, s22, {f*1024}")
        k(f"buffer_load_dwordx4 v2, s[8:11], s32 offen {SC} lds")
        q.issue(('wo', f))
    tile_ids(k)
    mk_srd(k, 4, 16, S*D*2)
    k("s_movk_i32 s42, 1280")
    k("v_mul_lo_u32 v8, v7, s42")
    k("v_lshl_add_u32 v8, v6, 3, v8")
    k(f"s_mul_i32 s42, s{CG}, 160")
    k("v_add_u32 v8, s42, v8")
    for cb in range(5):
        k(f"buffer_load_dwordx2 v[{112+2*cb}:{113+2*cb}], v8, s[4:7], 0 offen offset:{32*cb}")
        q.issue(('res', cb))
    k(f"s_lshl_b32 s36, s{RB}, 7")
    k(f"s_add_u32 s36, s36, {FL_1}")
    k("v_lshl_add_u32 v4, v5, 2, s36")
    k("s_sub_u32 s49, s3, 4")
    k(f"s_lshl_b32 s42, s{RB64}, 2")
    k("s_add_u32 s42, s42, s49")
    k("s_mul_i32 s44, s42, 20480")
    k(f"s_add_u32 s44, s44, {WS_O}")
    k(f"v_add_u32 v9, {WOL}, v2")
    k("v_add_u32 v10, 0x8000, v9")
    k("v_add_u32 v11, 0x10000, v9")
    k("v_add_u32 v12, 0x18000, v9")
    q.wait(('wo', 24))
    k("s_barrier")
    stn(k, 'B', 'D')
    poll(k, 4, None)
    stn(k, 'B', 'S1 seen')
    for ks in range(20):
        if ks % 4 == 0: k(f"s_add_u32 s45, s44, {ks*1024}")
        k(f"buffer_load_dwordx4 a[{4*ks}:{4*ks+3}], v2, s[8:11], s45 offen offset:{(ks % 4)*1024} {SC}")
    lq = Queue(k, 'lgkmcnt', 15)
    NB = 6
    def rd(n):
        off = n*1024
        b = (9, 10, 11, 12)[off >> 15]
        r = 64 + 4*(n % NB)
        k(f"ds_read_b128 v[{r}:{r+3}], v{b} offset:{off & 0x7fff}")
        lq.issue((n, 1))
    for n in range(NB - 1): rd(n)
    for ks in range(20):
        k(f"s_waitcnt vmcnt({19 - ks})")
        for cb in range(5):
            n = ks*5 + cb
            if n + NB - 1 < 100: rd(n + NB - 1)
            lq.wait((n, 1))
            r = 64 + 4*(n % NB)
            a = 32 + 4*cb
            c = f"v[{a}:{a+3}]" if ks else "0"
            k(f"v_mfma_f32_16x16x32_bf16 v[{a}:{a+3}], v[{r}:{r+3}], a[{4*ks}:{4*ks+3}], {c}")
    stn(k, 'B', 'p2 K done')
    k("s_nop 7")
    add_res_round(k)
    k("v_mov_b32 v18, 0")
    k("v_mov_b32 v19, 0")
    for i in range(10):
        k(f"v_lshlrev_b32 v16, 16, v{56+i}")
        k(f"v_and_b32 v17, 0xffff0000, v{56+i}")
        k("v_add_f32 v18, v18, v16")
        k("v_fmac_f32 v19, v16, v16")
        k("v_add_f32 v18, v18, v17")
        k("v_fmac_f32 v19, v17, v17")
    allreduce_rows(k, 18, 20)
    allreduce_rows(k, 19, 20)
    hfrag_addr_setup(k)
    k(f"s_mov_b32 s42, {WS_H}")
    for cb in range(5):
        k("v_lshrrev_b32 v23, 2, v22")
        k("v_lshl_add_u32 v24, v23, 10, v21")
        k("v_and_b32 v23, 3, v22")
        k("v_lshl_add_u32 v24, v23, 8, v24")
        k(f"buffer_store_dwordx2 v[{56+2*cb}:{57+2*cb}], v24, s[8:11], s42 offen {SC}")
        k("v_add_u32 v22, 2, v22")
    k("v_lshlrev_b32 v23, 6, v7")
    k(f"s_lshl_b32 s42, s{CG}, 3")
    k(f"s_add_u32 s42, s42, {WS_ST}")
    k("s_mov_b64 exec, 0xffff")
    k(f"buffer_store_dwordx2 v[18:19], v23, s[8:11], s42 offen {SC}")
    k("s_mov_b64 exec, -1")
    k("s_waitcnt vmcnt(0)")

def p4_compute(k, N):
    tile_ids(k)
    mk_srd(k, 4, 30, S*D*2)
    hfrag_addr_setup(k)
    k(f"s_mov_b32 s42, {WS_H}")
    for cb in range(5):
        k("v_lshrrev_b32 v23, 2, v22")
        k("v_lshl_add_u32 v24, v23, 10, v21")
        k("v_and_b32 v23, 3, v22")
        k("v_lshl_add_u32 v24, v23, 8, v24")
        k(f"buffer_load_dwordx2 v[{112+2*cb}:{113+2*cb}], v24, s[8:11], s42 offen {SC}")
        k("v_add_u32 v22, 2, v22")
    poll_wd(k)
    k(f"s_lshl_b32 s36, s{RB}, 7")
    k(f"s_add_u32 s36, s36, {FL_3}")
    k("v_lshl_add_u32 v4, v5, 2, s36")
    poll(k, 4, None)
    stn(k, 'B', 'S3 seen')
    ksplit_gemm(k, N, 'p4', 54, WS_HH, 54*1024, WS_WDP, depth=3)
    reduce_scatter(k)
    add_res_round(k)
    k("s_movk_i32 s42, 1280")
    k("v_mul_lo_u32 v8, v7, s42")
    k("v_lshl_add_u32 v8, v6, 3, v8")
    k(f"s_mul_i32 s42, s{CG}, 160")
    k("v_add_u32 v8, s42, v8")
    for cb in range(5):
        k(f"buffer_store_dwordx2 v[{56+2*cb}:{57+2*cb}], v8, s[4:7], 0 offen offset:{32*cb}")

def p3_units(k):
    k(f"s_mul_i32 s42, s{CC}, 7")
    k(f"s_sub_u32 s43, s{CC}, 12")
    k(f"s_cmp_gt_u32 s{CC}, 12")
    k("s_cselect_b32 s43, s43, 0")
    k("s_sub_u32 s42, s42, s43")
    k(f"s_cmp_lt_u32 s{CC}, 12")
    k("s_cselect_b32 s43, 7, 6")

def p3_dma(k, hi, sreg_g, sreg_l):
    base = (hi % NHS)*HSLOT
    for f in range(5):
        k(f"s_add_u32 m0, s{sreg_l}, {base + f*1024}")
        k(f"s_add_u32 s50, s{sreg_g}, {hi*HSLOT + f*1024}")
        k(f"buffer_load_dwordx4 v2, s[8:11], s50 offen {SC} lds")

def p3_compute(k, N):
    k("v_lshlrev_b32 v2, 4, v1")
    p3_units(k)
    poll_wgu(k)
    k("s_mul_i32 s47, s42, 40960")
    k("s_mul_i32 s48, s3, 5120")
    k("s_add_u32 s47, s47, s48")
    k(f"s_add_u32 s47, s47, {WS_WGU}")
    for hi in range(3):
        p3_dma(k, hi, 47, 48)
    k("s_lshl_b32 s45, s3, 6")
    k("v_add_u32 v3, s45, v1")
    k("v_lshlrev_b32 v4, 2, v3")
    k("s_lshl_b32 s45, s42, 7")
    k(f"s_add_u32 s45, s45, {WS_CSP}")
    for c in range(10):
        k(f"s_add_u32 s46, s45, {c*108*128}")
        k(f"buffer_load_dword v{16+c}, v4, s[8:11], s46 offen {SC}")
    k("s_waitcnt vmcnt(0)")
    for c in range(5): k(f"v_add_f32 v{16+c}, v{16+c}, v{21+c}")
    k("v_add_f32 v16, v16, v17")
    k("v_add_f32 v18, v18, v19")
    k("v_add_f32 v16, v16, v20")
    k("v_add_f32 v16, v16, v18")
    k(f"v_add_u32 v4, {GU_CS}, v4")
    k("s_barrier")
    k("v_cmp_gt_u32 vcc, 224, v3")
    k("s_and_saveexec_b64 s[52:53], vcc")
    k("ds_write_b32 v4, v16")
    k("s_mov_b64 exec, s[52:53]")
    stn(k, 'A', 'F')
    poll_row(k, FL_2)
    stn(k, 'A', 'S2 seen')
    k("v_and_b32 v3, 31, v1")
    k("v_lshrrev_b32 v4, 5, v1")
    k(f"s_lshl_b32 s44, s{RB}, 7")
    k("s_lshl_b32 s45, s3, 5")
    k("s_add_u32 s44, s44, s45")
    k("v_add_u32 v5, s44, v3")
    k("v_lshrrev_b32 v6, 4, v5")
    k("s_movk_i32 s44, 20480")
    k("v_mul_lo_u32 v6, v6, s44")
    k("v_and_b32 v7, 15, v5")
    k("v_lshl_add_u32 v6, v7, 4, v6")
    k("v_lshl_add_u32 v6, v4, 8, v6")
    def treg(ks): return f"a[{4*ks}:{4*ks+3}]" if ks < 32 else f"v[{96+4*(ks-32)}:{96+4*(ks-32)+3}]"
    k("v_lshlrev_b32 v7, 6, v5")
    k("v_lshl_add_u32 v7, v4, 5, v7")
    k(f"s_mov_b32 s44, {WS_ST}")
    k(f"buffer_load_dwordx4 v[16:19], v7, s[8:11], s44 offen {SC}")
    k(f"buffer_load_dwordx4 v[20:23], v7, s[8:11], s44 offen offset:16 {SC}")
    for ks in range(40):
        off = (ks >> 1)*1024 + (ks & 1)*512
        if ks % 8 == 0: k(f"s_mov_b32 s44, {WS_H + (off & ~0xfff)}")
        k(f"buffer_load_dwordx4 {treg(ks)}, v6, s[8:11], s44 offen offset:{off & 0xfff} {SC}")
    k("s_waitcnt vmcnt(40)")
    k("v_add_f32 v16, v16, v18")
    k("v_add_f32 v17, v17, v19")
    k("v_add_f32 v20, v20, v22")
    k("v_add_f32 v21, v21, v23")
    k("v_add_f32 v16, v16, v20")
    k("v_add_f32 v17, v17, v21")
    for v in (16, 17):
        k(f"v_mov_b32 v18, v{v}")
        k("s_nop 1")
        k(f"v_permlane32_swap_b32 v18, v{v}")
        k("s_nop 1")
        k(f"v_add_f32 v{v}, v{v}, v18")
    k(f"v_mul_f32 v16, {1.0/640!r}, v16")
    k(f"v_mul_f32 v17, {1.0/640!r}, v17")
    k("v_fma_f32 v17, -v16, v16, v17")
    k("v_max_f32 v17, 0, v17")
    k("v_add_f32 v17, 1e-5, v17")
    k("v_rcp_f32 v9, v17")
    k("v_sub_f32 v8, 0, v16")
    k("v_lshrrev_b32 v10, 4, v5")
    k("s_mov_b32 s44, 55296")
    k("v_mul_lo_u32 v10, v10, s44")
    k("v_and_b32 v7, 15, v5")
    k("v_lshl_add_u32 v10, v7, 4, v10")
    k("v_lshl_add_u32 v10, v4, 8, v10")
    k("v_lshlrev_b32 v11, 4, v4")
    k(f"v_add_u32 v11, {GU_CS}, v11")
    k("v_mov_b32 v12, v2")
    k(f"v_add_u32 v13, {3*HSLOT}, v2")
    k(f"v_add_u32 v14, {6*HSLOT}, v2")
    ACC = (16, 32); WF = 48; CS = 60
    lq = Queue(k, 'lgkmcnt', 15)
    def rd(hi, f):
        slot = hi % NHS
        b = (12, 13, 14)[slot // 3]
        o = (slot % 3)*HSLOT + f*1024
        r = WF + 4*((hi*20 + f) % 3)
        k(f"ds_read_b128 v[{r}:{r+3}], v{b} offset:{o}")
        lq.issue(('w', hi, f))
    def epilogue_steps(ui):
        A = ACC[ui % 2]
        L = []
        for a in range(4): L.append(('cs', ui, a))
        L.append(('waitcs', ui))
        for i in range(16): L.append(f"v_fma_f32 v{CS+i}, v8, v{CS+i}, v{A+i}")
        for i in range(8): L.append(f"v_mul_f32 v{CS+i}, v{CS+i}, v{CS+8+i}")
        for i in range(8): L.append(f"v_mul_f32 v{CS+i}, v{CS+i}, v9")
        for i in range(4): L.append(f"v_cvt_pk_bf16_f32 v{CS+8+i}, v{CS+2*i}, v{CS+2*i+1}")
        L.append(('addr', ui))
        L.append(f"buffer_store_dwordx4 v[{CS+8}:{CS+11}], v10, s[8:11], s46 offen {SC}")
        return L
    def emit(s):
        if isinstance(s, str): k(s); return
        if s[0] == 'cs':
            _, ui, a = s
            k(f"ds_read_b128 v[{CS+4*a}:{CS+4*a+3}], v11 offset:{ui*128 + a*32}")
            lq.issue(('cs', ui, a))
        elif s[0] == 'waitcs':
            lq.wait(('cs', s[1], 3))
        elif s[0] == 'addr':
            u = s[1]
            k(f"s_add_u32 s45, s42, {u}")
            k("s_lshr_b32 s46, s45, 1")
            k("s_lshl_b32 s46, s46, 10")
            k("s_and_b32 s45, s45, 1")
            k("s_lshl_b32 s45, s45, 9")
            k("s_add_u32 s46, s46, s45")
            k(f"s_add_u32 s46, s46, {WS_HH}")
    k("s_waitcnt vmcnt(0) lgkmcnt(0)")
    stn(k, 'A', 'h frags landed')
    k("s_barrier")
    stn(k, 'A', 'P3 B(-1)')
    rd(0, 0); rd(0, 1)
    pend = []; saved = None
    for hi in range(14):
        ui, half = hi // 2, hi % 2
        if hi == 12:
            k("s_cmp_eq_u32 s43, 6")
            k(f"s_cbranch_scc1 {N}_tail6")
            saved = (list(pend), list(lq.q))
        A = ACC[ui % 2]
        for f in range(20):
            ks = half*20 + f
            nf = f + 2
            nhi = hi + nf // 20
            if nhi < 14: rd(nhi, nf % 20)
            lq.wait(('w', hi, f))
            r = WF + 4*((hi*20 + f) % 3)
            src_c = f"v[{A}:{A+15}]" if ks > 0 else "0"
            k(f"v_mfma_f32_32x32x16_bf16 v[{A}:{A+15}], v[{r}:{r+3}], {treg(ks)}, {src_c}")
            if pend and ks >= 2:
                for _ in range(2):
                    if pend: emit(pend.pop(0))
        k("s_barrier")
        if half == 1:
            pend = epilogue_steps(ui)
    def flush(L):
        k("s_nop 7"); k("s_nop 7")
        for s in L: emit(s)
    stn(k, 'A', 'P3 loop end')
    flush(pend)
    k(f"s_branch {N}_p3end")
    k(f"{N}_tail6:")
    lq.q = saved[1]
    flush(saved[0])
    k("s_waitcnt lgkmcnt(0)")
    k("s_barrier"); k("s_barrier")
    k(f"{N}_p3end:")
    k("s_waitcnt vmcnt(0)")

def p3_loader(k, N):
    k("v_lshlrev_b32 v2, 4, v1")
    k("v_mov_b32 v120, v2")
    p3_units(k)
    k("s_sub_u32 s44, s3, 4")
    k("s_mul_i32 s47, s42, 40960")
    k("s_mul_i32 s48, s44, 5120")
    k("s_add_u32 s47, s47, s48")
    k(f"s_add_u32 s47, s47, {WS_WGU}")
    q = Queue(k, 'vmcnt', 63)
    def dma(hi):
        base = (hi % NHS)*HSLOT
        for f in range(5):
            k(f"s_add_u32 m0, s48, {base + f*1024}")
            k(f"s_add_u32 s50, s47, {hi*HSLOT + f*1024}")
            k(f"buffer_load_dwordx4 v120, s[8:11], s50 offen {SC} lds")
            q.issue(('h', hi, f))
    for hi in range(3, NHS - 1): dma(hi)
    k("s_barrier")
    for it in range(14):
        nk = it + NHS - 1
        if nk < 14:
            if nk >= 12:
                k("s_cmp_eq_u32 s43, 6")
                k("s_cselect_b32 s36, 0x80000000, 0")
                k("v_or_b32 v120, s36, v2")
            dma(nk)
        if it == 1:
            n = wd_issue(k)
            for j in range(n): q.issue(('wl', j))
            k("v_lshlrev_b32 v2, 4, v1")
        if it == 5:
            q.wait(('wl', 31))
            n = wd_process(k)
            for j in range(n): q.issue(('ws', j))
        if it == 9:
            q.wait(('ws', 3))
            job_flag(k, FL_0D, 61, NWDJ); q.issue(('wf', 0))
        need = it + 2
        if 3 <= need < 14:
            q.wait(('h', need, 4))
        k("s_barrier")

def kernel(name):
    N = 'P'
    k = Kern(name)
    k("s_cmp_ge_u32 s2, 256")
    k(f"s_cbranch_scc1 {N}_end")
    load_args(k)
    k("v_and_b32 v1, 63, v0")
    wave_id(k, 3, 2)
    stamp_init(k); stamp(k, 0); STN['A-waves'][0] = 'start'; STN['B-waves'][0] = 'start'
    k("s_and_b32 s36, s2, 7")
    k("s_lshr_b32 s37, s2, 3")
    k("s_lshr_b32 s38, s36, 1")
    k("s_lshl_b32 s39, s38, 2")
    k("s_lshr_b32 s40, s37, 3")
    k(f"s_add_u32 s{RB}, s39, s40")
    k("s_and_b32 s36, s36, 1")
    k("s_lshl_b32 s39, s36, 3")
    k("s_and_b32 s40, s37, 7")
    k(f"s_add_u32 s{CC}, s39, s40")
    k("s_lshr_b32 s40, s37, 2")
    k("s_and_b32 s40, s40, 1")
    k(f"s_lshl_b32 s39, s{RB}, 1")
    k(f"s_add_u32 s{RB64}, s39, s40")
    k("s_lshl_b32 s39, s36, 2")
    k("s_and_b32 s40, s37, 3")
    k(f"s_add_u32 s{CG}, s39, s40")
    k("s_waitcnt lgkmcnt(0)")
    k(f"s_mov_b32 s36, {FL_EPOCH}")
    k(f"s_load_dword s{TAG}, s[34:35], s36")
    mk_srd(k, 8, 34, WS_BYTES)
    k("s_cmp_ge_u32 s3, 4")
    k(f"s_cbranch_scc1 {N}_B")

    a_start(k, N)
    p1_compute(k, N)
    stn(k, 'A', 'attn stores issued')
    k("s_waitcnt vmcnt(0)")
    stn(k, 'A', 'attn drained')
    k("s_barrier")
    Lf = k.lab('f1')
    k("s_cmp_lg_u32 s3, 0")
    k(f"s_cbranch_scc1 {Lf}")
    k(f"s_lshl_b32 s40, s{RB}, 5")
    k(f"s_add_u32 s40, s40, s{CC}")
    set_flag(k, FL_1, 40)
    k(f"{Lf}:")
    p3_compute(k, N)
    stn(k, 'A', 'P3 end drained')
    k("s_barrier")
    Lf = k.lab('f3')
    k("s_cmp_lg_u32 s3, 0")
    k(f"s_cbranch_scc1 {Lf}")
    k(f"s_lshl_b32 s40, s{RB}, 5")
    k(f"s_add_u32 s40, s40, s{CC}")
    set_flag(k, FL_3, 40)
    k("s_cmp_lg_u32 s2, 0")
    k(f"s_cbranch_scc1 {Lf}")
    k(f"v_mov_b32 v3, s{TAG}")
    k("v_mov_b32 v4, 0")
    k(f"s_mov_b32 s36, {FL_EPOCH}")
    k("s_mov_b64 exec, 1")
    k(f"buffer_store_dword v3, v4, s[8:11], s36 offen {SC}")
    k("s_mov_b64 exec, -1")
    k(f"{Lf}:")
    k("s_barrier")
    stn(k, 'A', 'H')
    stamp_flush(k, 0)
    k("s_endpgm")

    k(f"{N}_B:")
    p1_loader(k, N)
    p2_compute(k, N)
    stn(k, 'B', 'P2 drained')
    k("s_barrier")
    Lf = k.lab('f2')
    k("s_cmp_lg_u32 s3, 4")
    k(f"s_cbranch_scc1 {Lf}")
    k(f"s_lshl_b32 s40, s{RB}, 5")
    k(f"s_and_b32 s41, s{RB64}, 1")
    k("s_lshl_b32 s41, s41, 3")
    k("s_add_u32 s40, s40, s41")
    k(f"s_add_u32 s40, s40, s{CG}")
    set_flag(k, FL_2, 40)
    k(f"{Lf}:")
    p3_loader(k, N)
    k("s_barrier")
    p4_compute(k, N)
    stn(k, 'B', 'out stores issued')
    k("s_waitcnt vmcnt(0)")
    stn(k, 'B', 'end')
    stamp_flush(k, 0)
    k(f"{N}_end:")
    return k.text(256, 102, acc=128)

def header():
    H = open('cdna_kernels/%s.s.ref' % NAME).read().split('\n')
    return '\n'.join(l for l in H if l.startswith(';') and '@launch' not in l and 'Override' not in l and 'grid=ceil' not in l) + '\n'

def main(stem):
    MAIN = NAME + "_kernel"
    txt = kernel(MAIN)
    launches = [(MAIN, 256, 512, LDS_BYTES)]
    assemble([txt], launches, stem, hdr=header())
    import json
    json.dump(launches, open(stem + '.json', 'w'))
    json.dump(STN, open(stem + '.names.json', 'w'))
    s = open(stem + '.s').read()
    s = s.replace(f"; @launch kernel={MAIN} grid=", "; @launch grid=")
    open(stem + '_final.s', 'w').write(s)

if __name__ == '__main__':
    main(sys.argv[1] if len(sys.argv) > 1 else 'pers')
```

```python
from asmlib import Kern
S, D, F = 2048, 640, 1728
NAME = "sequential_preLN__sliding_local_dilated__glu_gated_bilinear__prompt"
WS_XN  = 0x0000000
WS_W1P = 0x0400000
WS_WOP = 0x0800000
WS_WGU = 0x0A00000
WS_WDP = 0x1000000
WS_CSP = 0x1400000
WS_O   = 0x1500000
WS_H   = 0x1800000
WS_ST  = 0x1B00000
WS_HH  = 0x1C00000
WS_END = 0x2400000
WS_BYTES = 268435456
SRD3 = 0x00020000

def load_args(k):
    k("s_load_dwordx16 s[16:31], s[0:1], 0")
    k("s_load_dwordx4 s[32:35], s[0:1], 64")

def mk_srd(k, b, lo, nbytes):
    k(f"s_mov_b32 s{b}, s{lo}")
    k(f"s_mov_b32 s{b+1}, s{lo+1}")
    k(f"s_mov_b32 s{b+2}, {nbytes}")
    k(f"s_mov_b32 s{b+3}, 0x00020000")

def wave_id(k, sdst, vtmp):
    k(f"v_lshrrev_b32 v{vtmp}, 6, v0")
    k("s_nop 0")
    k(f"v_readfirstlane_b32 s{sdst}, v{vtmp}")

def udiv_magic(d, maxn):
    m = (1 << 32) // d + 1
    assert all(((n * m) >> 32) == n // d for n in range(maxn + 1))
    return m


class Queue:
    def __init__(s, k, kind, maxcnt):
        s.k = k; s.kind = kind; s.q = []; s.maxcnt = maxcnt
    def issue(s, tag):
        s.q.append(tag)
    def wait(s, tag):
        if tag not in s.q: return
        i = s.q.index(tag)
        n = len(s.q) - 1 - i
        assert n <= s.maxcnt, (s.kind, n)
        s.k(f"s_waitcnt {s.kind}({n})")
        s.q = s.q[i+1:]
    def drain(s):
        if s.q:
            s.k(f"s_waitcnt {s.kind}(0)")
            s.q = []


import os
STAMPS = os.environ.get('STAMPS', '0') == '1'
WS_STAMP = 0x3000000
NSTAMP = 16
def stamp(k, idx):
    if STAMPS:
        assert idx < NSTAMP
        k(f"s_memrealtime s[{64+2*idx}:{65+2*idx}]")
def stamp_init(k):
    if STAMPS:
        for i in range(NSTAMP): k(f"s_mov_b32 s{64+2*i}, 0")
DBGSTAMP = os.environ.get('DBGSTAMP', '0') == '1'
def stamp_flush_dbg(k, grp):
    k("s_waitcnt lgkmcnt(0)")
    k("s_load_dwordx2 s[96:97], s[0:1], 64")
    k("s_waitcnt lgkmcnt(0)")
    k("s_mov_b32 s98, 256\ns_mov_b32 s99, 0x00020000")
    k("s_mov_b64 exec, 1")
    k("v_mov_b32 v0, 0")
    k("s_not_b32 s64, s64")
    for i in range(NSTAMP):
        k(f"v_mov_b32 v1, s{64+2*i}")
        k(f"buffer_atomic_umax v1, v0, s[96:99], 0 offen offset:{4*i + (64 if grp == 'B' else 0)}")
    k("s_waitcnt vmcnt(0)")

def stamp_flush(k, kidx):
    if not STAMPS: return
    k("s_waitcnt lgkmcnt(0)")
    k("s_mov_b32 s96, s34\ns_mov_b32 s97, s35\ns_mov_b32 s98, 0x10000000\ns_mov_b32 s99, 0x00020000")
    k("s_lshl_b32 s100, s2, 3\ns_add_u32 s100, s100, s3\ns_lshl_b32 s100, s100, 6")
    k(f"s_add_u32 s100, s100, {WS_STAMP + kidx*0x40000}")
    k("s_mov_b64 exec, 1")
    k("v_mov_b32 v0, 0")
    for i in range(NSTAMP):
        k(f"v_mov_b32 v1, s{64+2*i}")
        k(f"buffer_store_dword v1, v0, s[96:99], s100 offen offset:{4*i}")
    k("s_waitcnt vmcnt(0)")
```

```python
import sys, os
from gen_common import *
from gen_prep import allreduce_rows
from asmlib import assemble

FL = 0x2400000
FL_EPOCH = FL
FL_0A = FL + 0x1000
FL_0B = FL + 0x60000
FL_1  = FL + 0x12000
FL_2  = FL + 0x1A000
FL_3  = FL + 0x22000
FL_0W = FL + 0x30000
FL_0D = FL + 0x70000
FL_0O = FL + 0x50000
WS_XS = 0x0000000
SC = 'sc1'
SPIN_MAX = 200000
SLEEP = int(os.environ.get('SLEEP', '4'))
RB, CC, RB64, CG, TAG = 56, 57, 58, 59, 60
ROW = 240
XSLOT = 18432; NXS = 5; WRING = NXS*XSLOT; WSLOT = 8192; NWS = 8
STAB = WRING + NWS*WSLOT
HSLOT = 20480; NHS = 7; GU_CS = NHS*HSLOT
RED = 3*HSLOT
WOL = 3*HSLOT
LDS_BYTES = 163840

STN = {'A-waves': {}, 'B-waves': {}}
STMODE = os.environ.get('STMODE', 'all')
P1ONLY = os.environ.get('P1ONLY', '0') == '1'
BUDGET = int(os.environ.get('BUDGET', '7'))
PROLOG = int(os.environ.get('PROLOG', '14'))
NOMFMA = os.environ.get('NOMFMA', '0') == '1'
NOX = os.environ.get('NOX', '0') == '1'
NOW = os.environ.get('NOW', '0') == '1'
def stn(k, grp, name, mode='all'):
    if mode != STMODE and not (name in ('start',)): return
    d = STN['A-waves' if grp == 'A' else 'B-waves']
    if name in d.values():
        idx = [i for i, n in d.items() if n == name][0]
    else:
        idx = len(d); d[idx] = name
    stamp(k, idx)

def set_flag(k, base, sidx):
    k(f"s_lshl_b32 s36, s{sidx}, 2")
    k(f"s_add_u32 s36, s36, {base}")
    k(f"v_mov_b32 v3, s{TAG}")
    k("v_mov_b32 v4, 0")
    k("s_mov_b64 s[38:39], exec")
    k("s_mov_b64 exec, 1")
    k(f"buffer_store_dword v3, v4, s[8:11], s36 offen {SC}")
    k("s_mov_b64 exec, s[38:39]")

def poll(k, voff, name, sleep=False):
    L = k.lab('poll'); Lx = k.lab('pollx')
    k("s_mov_b32 s51, 0")
    k(f"{L}:")
    k(f"buffer_load_dword v3, v{voff}, s[8:11], 0 offen {SC}")
    k("s_add_u32 s51, s51, 1")
    k(f"s_cmp_gt_u32 s51, {SPIN_MAX}")
    k(f"s_cbranch_scc1 {Lx}")
    k("s_waitcnt vmcnt(0)")
    k(f"v_cmp_ne_u32 vcc, s{TAG}, v3")
    k("s_nop 1")
    k(f"s_cbranch_vccz {Lx}")
    k(f"s_sleep {SLEEP}")
    k(f"s_branch {L}")
    k(f"{Lx}:")
    k("s_waitcnt vmcnt(0)")

def poll_wgu(k):
    k("v_min_u32 v4, 59, v1")
    k("v_cmp_le_u32 vcc, 30, v4")
    k("v_mov_b32 v5, 0")
    k("v_mov_b32 v6, 30")
    k("v_cndmask_b32 v5, v5, v6, vcc")
    k("v_sub_u32 v6, v4, v5")
    k("s_lshr_b32 s36, s42, 2")
    k("s_mul_i32 s36, s36, 10")
    k("v_add_u32 v6, s36, v6")
    k("v_min_u32 v6, 0x10d, v6")
    k("v_mul_u32_u24 v5, 9, v5")
    k("v_add_u32 v4, v6, v5")
    k("v_lshlrev_b32 v4, 3, v4")
    k(f"v_add_u32 v4, {FL_0B}, v4")
    poll(k, 4, None)

def poll_wd(k):
    k(f"s_mul_i32 s36, s{CG}, 5")
    k("s_lshr_b32 s36, s36, 2")
    k("s_mul_i32 s36, s36, 54")
    for half in range(2):
        k(f"v_min_u32 v4, {63 if half == 0 else 43}, v1")
        k(f"v_add_u32 v4, {64*half}, v4")
        k("v_add_u32 v4, s36, v4")
        k("v_lshlrev_b32 v4, 3, v4")
        k(f"v_add_u32 v4, {FL_0D}, v4")
        poll(k, 4, None)

def poll_row(k, base):
    k("v_and_b32 v4, 15, v1")
    k(f"s_lshl_b32 s36, s{RB}, 7")
    k(f"s_add_u32 s36, s36, {base}")
    k("v_lshl_add_u32 v4, v4, 2, s36")
    poll(k, 4, None)

def p0_stats(k):
    mk_srd(k, 4, 16, S * D * 2)
    k("v_and_b32 v2, 3, v1")
    k("v_lshrrev_b32 v3, 2, v1")
    k(f"s_lshl_b32 s37, s{RB}, 7")
    k(f"s_lshl_b32 s38, s{CC}, 3")
    k("s_add_u32 s37, s37, s38")
    k("s_lshl_b32 s38, s3, 2")
    k("s_add_u32 s37, s37, s38")
    k("v_add_u32 v4, s37, v2")
    k("s_movk_i32 s38, 1280")
    k("v_mul_lo_u32 v5, v4, s38")
    k("v_lshl_add_u32 v5, v3, 4, v5")
    for i in range(5):
        k(f"buffer_load_dwordx4 v[{16+4*i}:{19+4*i}], v5, s[4:7], 0 offen offset:{256*i}")
    k("v_mov_b32 v10, 0")
    k("v_mov_b32 v11, 0")
    k("s_waitcnt vmcnt(0)")
    for i in range(20):
        k(f"v_lshlrev_b32 v{40+2*i}, 16, v{16+i}")
        k(f"v_and_b32 v{41+2*i}, 0xffff0000, v{16+i}")
    for i in range(20):
        k(f"v_pk_add_f32 v[10:11], v[10:11], v[{40+2*i}:{41+2*i}]")
    k("v_add_f32 v10, v10, v11")
    def red(v):
        k("s_nop 1")
        k(f"v_add_f32_dpp v{v}, v{v}, v{v} row_ror:4 row_mask:0xf bank_mask:0xf")
        k("s_nop 1")
        k(f"v_add_f32_dpp v{v}, v{v}, v{v} row_ror:8 row_mask:0xf bank_mask:0xf")
        allreduce_rows(k, v, 12)
    red(10)
    k(f"v_mul_f32 v10, {-1.0/640!r}, v10")
    k("v_mov_b32 v14, 0")
    k("v_mov_b32 v15, 0")
    for i in range(20):
        k(f"v_pk_add_f32 v[{40+2*i}:{41+2*i}], v[{40+2*i}:{41+2*i}], v[10:11] op_sel_hi:[1,0]")
    for i in range(20):
        k(f"v_pk_fma_f32 v[14:15], v[{40+2*i}:{41+2*i}], v[{40+2*i}:{41+2*i}], v[14:15]")
    k("v_add_f32 v14, v14, v15")
    red(14)
    k(f"v_mul_f32 v14, {1.0/640!r}, v14")
    k("v_add_f32 v14, 1e-5, v14")
    k("v_rsq_f32 v11, v14")
    k("s_nop 0")
    k("v_mul_f32 v10, v10, v11")
    k("v_lshlrev_b32 v6, 3, v4")
    k(f"s_mov_b32 s38, {WS_XS}")
    k("s_mov_b64 exec, 15")
    k(f"buffer_store_dwordx2 v[10:11], v6, s[8:11], s38 offen {SC}")
    k("s_mov_b64 exec, -1")
    k("s_waitcnt vmcnt(0)")
    k(f"s_lshl_b32 s40, s{RB}, 4")
    k(f"s_add_u32 s40, s40, s{CC}")
    k("s_lshl_b32 s40, s40, 1")
    k("s_add_u32 s40, s40, s3")
    set_flag(k, FL_0A, 40)

def a_start(k, N):
    mk_srd(k, 4, 18, D * 3 * D * 2)
    k("v_and_b32 v2, 15, v1")
    k("v_lshrrev_b32 v3, 4, v1")
    k("v_mul_u32_u24 v4, 0x7800, v3")
    k(f"s_mul_i32 s39, s{CC}, 80")
    k("v_add_u32 v4, s39, v4")
    k("v_and_b32 v5, 3, v2")
    k("v_lshl_add_u32 v4, v5, 2, v4")
    k("v_lshrrev_b32 v5, 2, v2")
    for j in range(1, 8):
        k(f"s_movk_i32 s{40+j}, {3840*j}")
    k("s_mov_b32 s40, 0")
    k(f"s_mul_i32 s50, s{RB}, 5")
    k("s_add_u32 s50, s50, s3")
    k("s_cmp_eq_u32 s3, 3")
    k("s_cselect_b32 s36, 1, 0")
    k("s_add_u32 s50, s50, s36")
    k("v_lshlrev_b32 v9, 4, v1")
    def addr(i):
        k(f"s_add_u32 s52, s50, {i}")
        k("s_lshr_b32 s53, s52, 2")
        k("s_and_b32 s54, s52, 3")
        k("s_lshl_b32 s55, s54, 2")
        k("v_add_u32 v6, s55, v5")
        k("v_mul_u32_u24 v7, 52, v6")
        k("v_lshrrev_b32 v7, 8, v7")
        k("v_mul_u32_u24 v8, 5, v7")
        k("v_sub_u32 v8, v6, v8")
        k("v_mul_u32_u24 v7, 0x500, v7")
        k("v_lshl_add_u32 v7, v8, 4, v7")
        k(f"v_add_u32 v{10+i}, v4, v7")
        k(f"s_mul_i32 s55, s53, {32*3840}")
        k(f"v_add_u32 v{10+i}, s55, v{10+i}")
        k("v_mov_b32 v7, 0x80000000")
        k("v_cmp_eq_u32 vcc, 15, v6")
        k(f"s_mul_i32 s55, s{CC}, 20")
        k("s_add_u32 s55, s55, s53")
        k(f"v_cndmask_b32 v{10+i}, v{10+i}, v7, vcc")
        k("s_lshl_b32 s55, s55, 3")
        k("s_lshl_b32 s54, s54, 1")
        k("s_add_u32 s55, s55, s54")
        k("s_lshl_b32 s55, s55, 10")
        k(f"s_add_u32 s{61+i}, s55, {WS_W1P}")
        for j in range(8):
            k(f"buffer_load_dword v{16+8*i+j}, v{10+i}, s[4:7], s{40+j} offen")
    addr(0)
    k("s_cmp_lg_u32 s3, 2")
    k(f"s_cbranch_scc1 {N}_as1")
    addr(1)
    k(f"{N}_as1:")
    k("s_waitcnt vmcnt(0)")
    k("s_mov_b32 s48, 0x05040100")
    k("s_mov_b32 s49, 0x07060302")
    def proc(i):
        b = 16 + 8*i
        for m in range(4):
            k(f"v_perm_b32 v{80+8*i+m}, v{b+2*m+1}, v{b+2*m}, s48")
            k(f"v_perm_b32 v{84+8*i+m}, v{b+2*m+1}, v{b+2*m}, s49")
        k(f"buffer_store_dwordx4 v[{80+8*i}:{83+8*i}], v9, s[8:11], s{61+i} offen {SC}")
        k(f"buffer_store_dwordx4 v[{84+8*i}:{87+8*i}], v9, s[8:11], s{61+i} offen offset:1024 {SC}")
    proc(0)
    k("s_cmp_lg_u32 s3, 2")
    k(f"s_cbranch_scc1 {N}_as4")
    proc(1)
    k(f"{N}_as4:")
    stn(k, 'A', 'W1 stores issued')
    k("s_barrier")
    k("s_waitcnt vmcnt(0) lgkmcnt(0)")
    k(f"s_add_u32 s{TAG}, s{TAG}, 1")
    k(f"s_lshl_b32 s40, s{CC}, 6")
    k(f"s_lshl_b32 s41, s{RB}, 2")
    k("s_add_u32 s40, s40, s41")
    k("s_add_u32 s40, s40, s3")
    k("s_lshl_b32 s40, s40, 1")
    set_flag(k, FL_0W, 40)
    stn(k, 'A', 'W1 flag set')
    a_secondary(k, N)
    stn(k, 'A', 'ready')

def a_secondary(k, N):
    k("s_cmp_ge_u32 s3, 2")
    k(f"s_cbranch_scc1 {N}_as2")
    mk_srd(k, 4, 16, S * D * 2)
    k("v_and_b32 v2, 3, v1")
    k("v_lshrrev_b32 v3, 2, v1")
    k(f"s_lshl_b32 s37, s{RB}, 7")
    k(f"s_lshl_b32 s38, s{CC}, 3")
    k("s_add_u32 s37, s37, s38")
    k("s_lshl_b32 s38, s3, 2")
    k("s_add_u32 s37, s37, s38")
    k("v_add_u32 v33, s37, v2")
    k("s_movk_i32 s38, 1280")
    k("v_mul_lo_u32 v5, v33, s38")
    k("v_lshl_add_u32 v5, v3, 4, v5")
    for i in range(5):
        k(f"buffer_load_dwordx4 v[{48+4*i}:{51+4*i}], v5, s[4:7], 0 offen offset:{256*i}")
    k("v_mov_b32 v10, 0")
    k("v_mov_b32 v11, 0")
    k("s_waitcnt vmcnt(0)")
    for i in range(20):
        k(f"v_lshlrev_b32 v{80+2*i}, 16, v{48+i}")
        k(f"v_and_b32 v{81+2*i}, 0xffff0000, v{48+i}")
    for i in range(20):
        k(f"v_pk_add_f32 v[10:11], v[10:11], v[{80+2*i}:{81+2*i}]")
    k("v_add_f32 v10, v10, v11")
    def red(v):
        k("s_nop 1")
        k(f"v_add_f32_dpp v{v}, v{v}, v{v} row_ror:4 row_mask:0xf bank_mask:0xf")
        k("s_nop 1")
        k(f"v_add_f32_dpp v{v}, v{v}, v{v} row_ror:8 row_mask:0xf bank_mask:0xf")
        allreduce_rows(k, v, 12)
    red(10)
    k(f"v_mul_f32 v10, {-1.0/640!r}, v10")
    k("v_mov_b32 v14, 0")
    k("v_mov_b32 v15, 0")
    for i in range(20):
        k(f"v_pk_add_f32 v[{80+2*i}:{81+2*i}], v[{80+2*i}:{81+2*i}], v[10:11] op_sel_hi:[1,0]")
    for i in range(20):
        k(f"v_pk_fma_f32 v[14:15], v[{80+2*i}:{81+2*i}], v[{80+2*i}:{81+2*i}], v[14:15]")
    k("v_add_f32 v14, v14, v15")
    red(14)
    k(f"v_mul_f32 v14, {1.0/640!r}, v14")
    k("v_add_f32 v14, 1e-5, v14")
    k("v_rsq_f32 v11, v14")
    k("s_nop 0")
    k("v_mul_f32 v10, v10, v11")
    k("v_lshlrev_b32 v6, 3, v33")
    k(f"s_mov_b32 s38, {WS_XS}")
    k("s_mov_b64 exec, 15")
    k(f"buffer_store_dwordx2 v[10:11], v6, s[8:11], s38 offen {SC}")
    k("s_mov_b64 exec, -1")
    k(f"s_branch {N}_as6")
    k(f"{N}_as2:")
    k("s_cmp_ge_u32 s2, 200")
    k(f"s_cbranch_scc1 {N}_as6")
    mk_srd(k, 4, 20, D*D*2)
    k(f"s_mov_b32 s38, {udiv_magic(20, 600)}")
    k("s_mul_hi_u32 s37, s2, s38")
    k("s_mul_i32 s38, s37, 20")
    k("s_sub_u32 s38, s2, s38")
    k("s_lshl_b32 s39, s37, 7")
    k("v_lshl_add_u32 v5, v1, 1, s39")
    k("s_mul_i32 s36, s38, 40960")
    k("s_sub_u32 s39, s3, 2")
    k("s_mul_i32 s39, s39, 20480")
    k("s_add_u32 s36, s36, s39")
    for q in range(2):
        for j in range(8):
            k(f"s_add_u32 s55, s36, {(8*q+j)*1280}")
            k(f"buffer_load_ushort v{48+8*q+j}, v5, s[4:7], s55 offen")
    k("v_lshrrev_b32 v5, 4, v1")
    k("s_lshl_b32 s39, s37, 2")
    k("v_add_u32 v5, s39, v5")
    k("v_mul_u32_u24 v6, 52, v5")
    k("v_lshrrev_b32 v6, 8, v6")
    k("v_mul_u32_u24 v7, 5, v6")
    k("v_sub_u32 v7, v5, v7")
    k("v_mul_u32_u24 v6, 100, v6")
    k("v_add_u32 v6, v6, v7")
    k("v_lshlrev_b32 v6, 10, v6")
    k("v_and_b32 v7, 15, v1")
    k("v_lshl_add_u32 v6, v7, 4, v6")
    k("s_mul_i32 s39, s38, 5120")
    k("s_sub_u32 s38, s3, 2")
    k("s_lshl_b32 s38, s38, 9")
    k("s_add_u32 s39, s39, s38")
    k(f"s_add_u32 s39, s39, {WS_WOP}")
    k("s_waitcnt vmcnt(0)")
    for q in range(2):
        b = 48 + 8*q
        for m in range(4):
            k(f"v_lshl_or_b32 v{80+4*q+m}, v{b+2*m+1}, 16, v{b+2*m}")
        k(f"buffer_store_dwordx4 v[{80+4*q}:{83+4*q}], v6, s[8:11], s39 offen offset:{256*q} {SC}")
    k(f"{N}_as6:")

def a_secondary_flags(k, N):
    k("s_waitcnt vmcnt(0)")
    L = k.lab('sec'); L2 = k.lab('sec'); L3 = k.lab('sec')
    k("s_cmp_ge_u32 s3, 2")
    k(f"s_cbranch_scc1 {L}")
    k(f"s_lshl_b32 s40, s{RB}, 4")
    k(f"s_add_u32 s40, s40, s{CC}")
    k("s_lshl_b32 s40, s40, 1")
    k("s_add_u32 s40, s40, s3")
    k("s_lshl_b32 s36, s40, 3")
    k(f"s_add_u32 s36, s36, {FL_0A}")
    k(f"s_branch {L2}")
    k(f"{L}:")
    k("s_cmp_ge_u32 s2, 200")
    k(f"s_cbranch_scc1 {L3}")
    k("s_lshl_b32 s36, s2, 1")
    k("s_add_u32 s36, s36, s3")
    k("s_sub_u32 s36, s36, 2")
    k("s_lshl_b32 s36, s36, 3")
    k(f"s_add_u32 s36, s36, {FL_0O}")
    k(f"{L2}:")
    k(f"v_mov_b32 v3, s{TAG}")
    k("v_mov_b32 v9, 0")
    k("s_mov_b64 exec, 1")
    k(f"buffer_store_dword v3, v9, s[8:11], s36 offen {SC}")
    k("s_mov_b64 exec, -1")
    k(f"{L3}:")

NGUJ = 540
def gu_issue(k, N):
    k("s_lshr_b32 s36, s63, 2")
    k("s_add_u32 s36, s36, s2")
    k("s_mov_b32 s61, s36")
    k(f"s_mov_b32 s38, {udiv_magic(270, 1100)}")
    k("s_mul_hi_u32 s37, s36, s38")
    k("s_mul_i32 s38, s37, 270")
    k("s_sub_u32 s38, s36, s38")
    k(f"s_mov_b32 s39, {udiv_magic(10, 300)}")
    k("s_mul_hi_u32 s39, s38, s39")
    k("s_mul_i32 s40, s39, 10")
    k("s_sub_u32 s40, s38, s40")
    k("s_cmp_eq_u32 s37, 0")
    k("s_cselect_b32 s4, s24, s26")
    k("s_cselect_b32 s5, s25, s27")
    k(f"s_mov_b32 s6, {D*F*2}")
    k("s_mov_b32 s7, 0x00020000")
    k("v_and_b32 v2, 15, v1")
    k("v_lshrrev_b32 v3, 4, v1")
    k("s_lshl_b32 s41, s40, 6")
    k("v_lshl_add_u32 v4, v3, 3, s41")
    k("s_movk_i32 s41, 3456")
    k("v_mul_lo_u32 v4, v4, s41")
    k("s_lshl_b32 s41, s39, 7")
    k("v_add_u32 v4, s41, v4")
    k("v_lshl_add_u32 v4, v2, 3, v4")
    k("v_mov_b32 v5, 0x80000000")
    k(f"s_cmp_ge_u32 s36, {NGUJ}")
    k("s_cselect_b64 vcc, -1, 0")
    k("s_mov_b32 s44, s37\ns_mov_b32 s46, s39\ns_mov_b32 s47, s40")
    k("v_cndmask_b32 v4, v4, v5, vcc")
    for p in range(2):
        for j in range(8):
            k(f"s_mov_b32 s41, {(32*p + j)*3456}")
            b = 16 + 16*p + 2*j
            k(f"buffer_load_dwordx2 v[{b}:{b+1}], v4, s[4:7], s41 offen")
    return 16

def gu_process(k, N):
    k("v_and_b32 v2, 15, v1")
    k("v_lshrrev_b32 v3, 4, v1")
    k("v_lshrrev_b32 v5, 1, v3")
    k("v_lshlrev_b32 v5, 10, v5")
    k("v_and_b32 v6, 1, v3")
    k("v_lshl_add_u32 v5, v6, 9, v5")
    k("v_lshl_add_u32 v5, v2, 4, v5")
    k("s_lshl_b32 s41, s44, 8")
    k("v_add_u32 v5, s41, v5")
    k(f"s_mul_i32 s42, s46, {4*40960}")
    k("s_lshl_b32 s43, s47, 12")
    k("s_add_u32 s42, s42, s43")
    k(f"s_add_u32 s42, s42, {WS_WGU}")
    k("v_mov_b32 v7, 0x80000000")
    k(f"s_cmp_ge_u32 s61, {NGUJ}")
    k("s_cselect_b64 vcc, -1, 0")
    k("s_cselect_b32 s42, 0, s42")
    k("s_mov_b32 s48, 0x05040100")
    k("s_mov_b32 s49, 0x07060302")
    k("s_mov_b32 s50, 0x3f803f80")
    k("v_cndmask_b32 v5, v5, v7, vcc")
    k("v_lshlrev_b32 v6, 2, v2")
    k("v_cndmask_b32 v6, v6, v7, vcc")
    for c in range(4): k(f"v_mov_b32 v{8+c}, 0")
    for p in range(2):
        b = 16 + 16*p
        for c in range(4):
            o = 80 + 4*c + 16*p
            for m in range(4):
                sel = 's48' if c % 2 == 0 else 's49'
                k(f"v_perm_b32 v{o+m}, v{b+4*m+2+(c>>1)}, v{b+4*m+(c>>1)}, {sel}")
        for c in range(4):
            o = 80 + 4*c + 16*p
            k(f"s_add_u32 s43, s42, {c*40960 + p*2048}")
            k(f"buffer_store_dwordx4 v[{o}:{o+3}], v5, s[8:11], s43 offen {SC}")
    for p in range(2):
        for m in range(4):
            for c in range(4):
                o = 80 + 4*c + 16*p
                k(f"v_dot2c_f32_bf16 v{8+c}, s50, v{o+m}")
    k("s_nop 2")
    for c in range(4):
        allreduce_rows(k, 8+c, 12)
    k("s_mul_i32 s43, s47, 108")
    k("s_lshl_b32 s48, s46, 2")
    k("s_add_u32 s43, s43, s48")
    k("s_lshl_b32 s43, s43, 7")
    k("s_lshl_b32 s48, s44, 6")
    k("s_add_u32 s43, s43, s48")
    k(f"s_add_u32 s43, s43, {WS_CSP}")
    k(f"s_cmp_ge_u32 s61, {NGUJ}")
    k("s_cselect_b32 s43, 0, s43")
    k("s_mov_b64 exec, 0xffff")
    for c in range(4):
        k(f"buffer_store_dword v{8+c}, v6, s[8:11], s43 offen offset:{128*c} {SC}")
    k("s_mov_b64 exec, -1")
    return 12

def job_flag(k, base, sj, njobs):
    k(f"s_lshl_b32 s36, s{sj}, 3")
    k(f"s_add_u32 s36, s36, {base}")
    k(f"s_cmp_ge_u32 s{sj}, {njobs}")
    k("s_cselect_b32 s38, 0x80000000, 0")
    k("s_cselect_b32 s36, 0, s36")
    k("v_mov_b32 v9, s38")
    k(f"v_mov_b32 v3, s{TAG}")
    k("s_mov_b64 exec, 1")
    k(f"buffer_store_dword v3, v9, s[8:11], s36 offen {SC}")
    k("s_mov_b64 exec, -1")

NWDJ = 540
def wd_issue(k):
    k("s_sub_u32 s36, s3, 4")
    k("s_lshl_b32 s36, s36, 8")
    k("s_add_u32 s36, s36, s2")
    k("s_mov_b32 s61, s36")
    mk_srd(k, 4, 28, F*D*2)
    k(f"s_mov_b32 s38, {udiv_magic(54, 1100)}")
    k("s_mul_hi_u32 s37, s36, s38")
    k("s_mul_i32 s38, s37, 54")
    k("s_sub_u32 s38, s36, s38")
    k("s_mov_b32 s62, s37\ns_mov_b32 s63, s38")
    k("s_lshl_b32 s39, s37, 7")
    k("v_lshl_add_u32 v4, v1, 1, s39")
    k("v_mov_b32 v5, 0x80000000")
    k(f"s_cmp_ge_u32 s36, {NWDJ}")
    k("s_cselect_b64 vcc, -1, 0")
    k("s_cselect_b32 s38, 0, s38")
    k("s_nop 0")
    k("v_cndmask_b32 v4, v4, v5, vcc")
    for q in range(4):
        k(f"s_lshl_b32 s40, s38, 1")
        if q >> 1: k("s_add_u32 s40, s40, 1")
        k("s_lshr_b32 s41, s40, 2")
        k("s_lshl_b32 s41, s41, 6")
        k("s_and_b32 s40, s40, 3")
        k("s_add_u32 s40, s40, s41")
        k("s_mul_i32 s40, s40, 1280")
        for j in range(8):
            d = 4*(8*(j >> 2) + 4*(q & 1) + (j & 3)) * 1280
            k(f"s_add_u32 s41, s40, {d}")
            k(f"buffer_load_ushort v{16+8*q+j}, v4, s[4:7], s41 offen")
    return 32

def wd_process(k):
    k("v_lshrrev_b32 v5, 4, v1")
    k("s_lshl_b32 s39, s62, 2")
    k("v_add_u32 v5, s39, v5")
    k("v_mul_u32_u24 v6, 52, v5")
    k("v_lshrrev_b32 v6, 8, v6")
    k("v_mul_u32_u24 v7, 5, v6")
    k("v_sub_u32 v7, v5, v7")
    k("v_mul_u32_u24 v6, 0x10e, v6")
    k("v_add_u32 v6, v6, v7")
    k("v_lshlrev_b32 v6, 10, v6")
    k("v_and_b32 v7, 15, v1")
    k("v_lshl_add_u32 v6, v7, 4, v6")
    k("s_mul_i32 s39, s63, 5120")
    k(f"s_add_u32 s39, s39, {WS_WDP}")
    k("v_mov_b32 v7, 0x80000000")
    k(f"s_cmp_ge_u32 s61, {NWDJ}")
    k("s_cselect_b64 vcc, -1, 0")
    k("s_cselect_b32 s39, 0, s39")
    k("s_nop 0")
    k("v_cndmask_b32 v6, v6, v7, vcc")
    for q in range(4):
        b = 16 + 8*q
        for m in range(4):
            k(f"v_lshl_or_b32 v{48+4*q+m}, v{b+2*m+1}, 16, v{b+2*m}")
        k(f"buffer_store_dwordx4 v[{48+4*q}:{51+4*q}], v6, s[8:11], s39 offen offset:{256*q} {SC}")
    return 4

def p1_compute(k, N):
    ACC = 32; XF = 104
    k("v_and_b32 v9, 15, v1")
    k("v_lshrrev_b32 v10, 4, v1")
    k("v_and_b32 v11, 7, v9")
    k("v_xor_b32 v12, v10, v11")
    k("v_lshlrev_b32 v12, 4, v12")
    k("v_lshl_add_u32 v4, v9, 7, v12")
    k("v_xor_b32 v5, 64, v4")
    k(f"v_add_u32 v6, {3*XSLOT}, v4")
    k(f"v_add_u32 v7, {3*XSLOT}, v5")
    k("s_lshl_b32 s42, s3, 11")
    k(f"s_add_u32 s42, s42, {WRING}")
    k("v_lshl_add_u32 v8, v1, 4, s42")
    for i in range(72): k(f"v_mov_b32 v{ACC+i}, 0")
    Lo = k.lab('ones')
    k("s_cmp_lg_u32 s3, 2")
    k(f"s_cbranch_scc1 {Lo}")
    k("v_lshlrev_b32 v12, 4, v1")
    for i in range(4): k(f"v_mov_b32 v{104+i}, 0x3f803f80")
    k("s_mov_b64 exec, 0xff")
    for sl in range(NXS):
        if sl*XSLOT < 65536:
            k(f"ds_write_b128 v12, v[104:107] offset:{sl*XSLOT}")
        else:
            k(f"v_add_u32 v13, {sl*XSLOT}, v12")
            k(f"ds_write_b128 v13, v[104:107]")
    k("s_mov_b64 exec, -1")
    k("s_waitcnt lgkmcnt(0)")
    k(f"{Lo}:")
    lq = Queue(k, 'lgkmcnt', 15)
    def rd_x(ks, tb):
        j, p = ks >> 1, ks & 1
        sl = j % NXS
        b = (4, 5)[p] if sl < 3 else (6, 7)[p]
        o = (sl % 3)*XSLOT + tb*2048
        r = XF + 4*((ks*9 + tb) % 4)
        k(f"ds_read_b128 v[{r}:{r+3}], v{b} offset:{o}")
        lq.issue(('x', ks, tb))
    def rd_w(ks):
        o = (ks % NWS)*WSLOT
        r = 8*(ks % 2)
        for cb in range(2):
            k(f"ds_read_b128 a[{r+4*cb}:{r+4*cb+3}], v8 offset:{o + cb*1024}")
            lq.issue(('w', ks, cb))
    k("s_barrier")
    stn(k, 'A', 'P1 B(-1)'); stn(k, 'A', 'P1 B(-1)', 'p1')
    rd_w(0); rd_x(0, 0); rd_x(0, 1); rd_x(0, 2)
    for ks in range(20):
        for tb in range(9):
            n = ks*9 + tb + 3
            nks, ntb = n // 9, n % 9
            if nks < 20:
                if ntb == 0: rd_w(nks)
                rd_x(nks, ntb)
            lq.wait(('x', ks, tb))
            x = XF + 4*((ks*9 + tb) % 4)
            w = 8*(ks % 2)
            a0 = ACC + tb*4; a1 = ACC + (9+tb)*4
            if not NOMFMA:
                k(f"v_mfma_f32_16x16x32_bf16 v[{a0}:{a0+3}], a[{w}:{w+3}], v[{x}:{x+3}], v[{a0}:{a0+3}]")
                k(f"v_mfma_f32_16x16x32_bf16 v[{a1}:{a1+3}], a[{w+4}:{w+7}], v[{x}:{x+3}], v[{a1}:{a1+3}]")
        if ks == 2: a_secondary_flags(k, N)
        if ks < 19:
            k("s_barrier")
        if ks in (0, 1, 2, 3, 5, 7, 9, 10, 11, 13, 15, 17, 19): stn(k, 'A', f'ks {ks} done', 'p1')
    k("s_barrier")
    if P1ONLY:
        stn(k, 'A', 'K end', 'p1'); stamp_flush(k, 0); k("s_endpgm")
    stn(k, 'A', 'P1 K end')
    k("v_and_b32 v9, 15, v1")
    k("v_lshrrev_b32 v10, 4, v1")
    k(f"v_lshlrev_b32 v11, 3, v9")
    k(f"v_add_u32 v11, {STAB}, v11")
    for tb in range(9):
        k(f"ds_read_b64 v[{12+2*tb}:{13+2*tb}], v11 offset:{tb*128}")
    k("s_nop 4")
    for cb in range(2):
        for i in range(4):
            k(f"v_mov_b32_dpp v{104+4*cb+i}, v{ACC+cb*36+i} row_newbcast:0 row_mask:0xf bank_mask:0xf")
    k("s_lshl_b32 s42, s3, 2")
    k("v_add_u32 v30, s42, v10")
    k(f"v_mul_u32_u24 v31, {ROW}, v9")
    k("v_lshl_add_u32 v113, v30, 4, v31")
    k(f"v_mov_b32 v115, {144*ROW + 64}")
    k("v_lshl_add_u32 v115, v9, 4, v115")
    k("v_cmp_eq_u32 vcc, 15, v30")
    k(f"v_mov_b32 v116, {16*ROW}")
    k("v_mov_b32 v117, 0")
    k("v_cndmask_b32 v113, v113, v115, vcc")
    k("v_cndmask_b32 v116, v116, v117, vcc")
    k("s_waitcnt lgkmcnt(0)")
    for tb in range(9):
        m = 12 + 2*tb
        for cb in range(2):
            a = ACC + (cb*9+tb)*4
            cs = 104 + 4*cb
            t = 118 + 4*cb
            k(f"v_pk_mul_f32 v[{t}:{t+1}], v[{cs}:{cs+1}], v[{m}:{m+1}] op_sel_hi:[1,0]")
            k(f"v_pk_mul_f32 v[{t+2}:{t+3}], v[{cs+2}:{cs+3}], v[{m}:{m+1}] op_sel_hi:[1,0]")
            k(f"v_pk_fma_f32 v[{t}:{t+1}], v[{a}:{a+1}], v[{m}:{m+1}], v[{t}:{t+1}] op_sel:[0,1,0] op_sel_hi:[1,1,1]")
            k(f"v_pk_fma_f32 v[{t+2}:{t+3}], v[{a+2}:{a+3}], v[{m}:{m+1}], v[{t+2}:{t+3}] op_sel:[0,1,0] op_sel_hi:[1,1,1]")
        r = 2 + 0
        o = 4 if tb % 2 == 0 else 4
        for i in range(4):
            k(f"v_cvt_pk_bf16_f32 v{4+i}, v{118+i}, v{122+i}")
        k(f"ds_write_b128 v113, v[4:7]")
        if tb < 8:
            k("v_add_u32 v113, v113, v116")
    k("s_waitcnt lgkmcnt(0)")
    k("s_barrier")
    stn(k, 'A', 'qkv in LDS')
    k("v_and_b32 v9, 31, v1")
    k("s_lshl_b32 s42, s3, 5")
    k("v_add_u32 v9, s42, v9")
    k("v_lshrrev_b32 v10, 5, v1")
    k(f"v_add_u32 v11, 16, v9")
    k(f"v_mul_u32_u24 v11, {ROW}, v11")
    k("v_mul_u32_u24 v12, 48, v10")
    k("v_add_u32 v12, v11, v12")
    k("v_lshlrev_b32 v13, 3, v10")
    k("v_add_u32 v13, v11, v13")
    Q = 16; KV = 28; KV2 = 40; LG = 52; O = 64; P2 = 60
    k(f"ds_read_b128 v[{Q}:{Q+3}], v12")
    k(f"ds_read_b128 v[{Q+4}:{Q+7}], v12 offset:16")
    k(f"ds_read_b64 v[{Q+8}:{Q+9}], v13 offset:32")
    k(f"s_lshl_b32 s42, s{RB}, 7")
    k("v_add_u32 v14, s42, v9")
    k(f"v_mov_b32 v15, v12")
    k(f"v_mov_b32 v26, v13")
    def rd_row(dst, seg, j):
        off = (14 - 2*j)*ROW + seg
        k(f"ds_read_b128 v[{dst}:{dst+3}], v15 offset:{off}")
        k(f"ds_read_b128 v[{dst+4}:{dst+7}], v15 offset:{off+16}")
        k(f"ds_read_b64 v[{dst+8}:{dst+9}], v26 offset:{off+32}")
    k(f"v_subrev_u32 v15, {14*ROW}, v15")
    k(f"v_subrev_u32 v26, {14*ROW}, v26")
    rd_row(KV, 80, 0)
    for j in range(8):
        cur = KV if j % 2 == 0 else KV2
        nxt = KV2 if j % 2 == 0 else KV
        if j < 7: rd_row(nxt, 80, j+1)
        k(f"s_waitcnt lgkmcnt({3 if j < 7 else 0})")
        k(f"v_mov_b32 v{LG+j}, 0")
        for i in range(10):
            k(f"v_dot2c_f32_bf16 v{LG+j}, v{Q+i}, v{cur+i}")
    rd_row(KV, 160, 0)
    rd_row(KV2, 160, 1)
    c = (20 ** -0.5) * 1.4426950408889634
    k("s_nop 2")
    for j in range(8):
        k(f"v_mul_f32 v{LG+j}, {c!r}, v{LG+j}")
    k("v_mov_b32 v27, -1e9")
    for j in range(1, 8):
        k(f"v_cmp_le_u32 vcc, {2*j}, v14")
        k("s_nop 1")
        k(f"v_cndmask_b32 v{LG+j}, v27, v{LG+j}, vcc")
    k(f"v_max3_f32 v27, v{LG}, v{LG+1}, v{LG+2}")
    k(f"v_max3_f32 v27, v27, v{LG+3}, v{LG+4}")
    k(f"v_max3_f32 v27, v27, v{LG+5}, v{LG+6}")
    k(f"v_max_f32 v27, v27, v{LG+7}")
    for j in range(8):
        k(f"v_sub_f32 v{LG+j}, v{LG+j}, v27")
    for j in range(8):
        k(f"v_exp_f32 v{LG+j}, v{LG+j}")
    k("s_nop 0")
    k(f"v_add_f32 v27, v{LG}, v{LG+1}")
    for j in range(2, 8):
        k(f"v_add_f32 v27, v27, v{LG+j}")
    k("v_rcp_f32 v27, v27")
    k("s_nop 0")
    for j in range(8):
        k(f"v_mul_f32 v{LG+j}, v{LG+j}, v27")
    for jj in range(4):
        k(f"v_cvt_pk_bf16_f32 v{P2+jj}, v{LG+2*jj}, v{LG+2*jj+1}")
    for i in range(20):
        k(f"v_mov_b32 v{O+i}, 0")
    k("s_mov_b32 s42, 0x05040100")
    k("s_mov_b32 s43, 0x07060302")
    VA, VB = KV, KV2
    T0 = 84
    for jj in range(4):
        k("s_waitcnt lgkmcnt(0)")
        for i in range(10):
            k(f"v_perm_b32 v{T0+2*i}, v{VB+i}, v{VA+i}, s42")
            k(f"v_perm_b32 v{T0+2*i+1}, v{VB+i}, v{VA+i}, s43")
        if jj < 3:
            rd_row(VA, 160, 2*jj+2)
            rd_row(VB, 160, 2*jj+3)
        for i in range(20):
            k(f"v_dot2c_f32_bf16 v{O+i}, v{P2+jj}, v{T0+i}")
    k("s_nop 2")
    for i in range(10):
        k(f"v_cvt_pk_bf16_f32 v{Q+i}, v{O+2*i}, v{O+2*i+1}")
    k("v_lshrrev_b32 v28, 4, v14")
    k("s_movk_i32 s42, 20480")
    k("v_mul_lo_u32 v28, v28, s42")
    k("v_and_b32 v29, 15, v14")
    k("v_lshl_add_u32 v28, v29, 4, v28")
    k(f"s_mul_i32 s42, s{CC}, 5")
    def oaddr(dst, ogreg):
        k(f"v_lshrrev_b32 v30, 2, v{ogreg}")
        k(f"v_lshl_add_u32 v{dst}, v30, 10, v28")
        k(f"v_and_b32 v30, 3, v{ogreg}")
        k(f"v_lshl_add_u32 v{dst}, v30, 8, v{dst}")
    k("v_mul_u32_u24 v31, 3, v10")
    k("v_add_u32 v31, s42, v31")
    oaddr(32, 31)
    k("v_add_u32 v31, 1, v31")
    oaddr(33, 31)
    k("s_add_u32 s42, s42, 2")
    k("v_mov_b32 v31, s42")
    oaddr(34, 31)
    k("v_lshl_add_u32 v34, v10, 3, v34")
    k(f"s_mov_b32 s42, {WS_O}")
    k(f"buffer_store_dwordx4 v[{Q}:{Q+3}], v32, s[8:11], s42 offen {SC}")
    k(f"buffer_store_dwordx4 v[{Q+4}:{Q+7}], v33, s[8:11], s42 offen {SC}")
    k(f"buffer_store_dwordx2 v[{Q+8}:{Q+9}], v34, s[8:11], s42 offen {SC}")

def p1_loader(k, N):
    VX, VX0, VW = 120, 121, 122
    mk_srd(k, 12, 16, S*D*2)
    k("s_sub_u32 s63, s3, 4")
    k("v_lshrrev_b32 v2, 3, v1")
    k("v_and_b32 v3, 7, v1")
    k("v_xor_b32 v3, v3, v2")
    k("v_lshlrev_b32 v3, 4, v3")
    k("v_mul_u32_u24 v2, 0x500, v2")
    k(f"v_add_u32 v{VX}, v2, v3")
    k(f"s_lshl_b32 s22, s{RB}, 7")
    k("s_sub_u32 s22, s22, 16")
    k("s_lshl_b32 s36, s63, 3")
    k("s_add_u32 s22, s22, s36")
    k("s_mul_i32 s22, s22, 1280")
    k(f"s_cmp_eq_u32 s{RB}, 0")
    k("s_cselect_b32 s36, 1, 0")
    k("s_cmp_lt_u32 s63, 2")
    k("s_cselect_b32 s36, s36, 0")
    k("s_cmp_eq_u32 s36, 1")
    k("s_cselect_b32 s23, 0, s22")
    k("s_cselect_b32 s36, 0x80000000, 0")
    k(f"v_or_b32 v{VX0}, s36, v{VX}")
    k("s_cmp_eq_u32 s63, 0")
    k("s_cselect_b32 s32, 0xffffff00, -1")
    k("s_mov_b32 s33, -1")
    k(f"v_lshlrev_b32 v{VW}, 4, v1")
    k(f"s_mul_i32 s62, s{CC}, 163840")
    k("s_lshl_b32 s36, s63, 11")
    k("s_add_u32 s62, s62, s36")
    k(f"s_add_u32 s62, s62, {WS_W1P}")
    k("s_lshl_b32 s63, s63, 10")
    k("v_mov_b32 v123, 0x80000000")
    def issue_x(q, j, nx):
        base = (j % NXS)*XSLOT
        for m in range(nx):
            k(f"s_add_u32 m0, s63, {base + m*4096}")
            if NOX:
                k("s_nop 0"); k("buffer_load_dwordx4 v123, s[12:15], 0 offen lds")
            elif m == 0:
                k(f"s_add_u32 s48, s23, {j*128}")
                k("s_mov_b64 exec, s[32:33]")
                k(f"buffer_load_dwordx4 v{VX0}, s[12:15], s48 offen lds")
                k("s_mov_b64 exec, -1")
            else:
                k(f"s_add_u32 s48, s22, {m*32*1280 + j*128}")
                k(f"buffer_load_dwordx4 v{VX}, s[12:15], s48 offen lds")
            q.issue(('x', j, m))
    def issue_w(q, ks):
        base = WRING + (ks % NWS)*WSLOT
        for m in range(2):
            k(f"s_lshl_b32 s49, s63, 1")
            k(f"s_add_u32 m0, s49, {base + m*1024}")
            k(f"s_add_u32 s48, s62, {ks*8192 + m*1024}")
            k(f"buffer_load_dwordx4 v{VW}, s[8:11], s48 offen {SC} lds")
            q.issue(('w', ks, m))
    order_all = []
    for j in range(10):
        order_all += [('x', j), ('w', 2*j), ('w', 2*j+1)]
    order = list(order_all)
    def earliest(g):
        return (2*g[1] - 8) if g[0] == 'x' else (g[1] - 7)
    for var, nx in (('a', 5), ('b', 4)):
        if var == 'a':
            k("s_cmp_ge_u32 s63, 2048")
            k(f"s_cbranch_scc1 {N}_p1ld_b")
        else:
            k(f"{N}_p1ld_b:")
        V = N + var
        q = Queue(k, 'vmcnt', 63)
        pos = [0]
        def issue_upto(it, budget):
            n = 0
            while pos[0] < len(order) and n < budget and earliest(order[pos[0]]) <= it:
                g = order[pos[0]]
                if g[0] == 'x': issue_x(q, g[1], nx); n += nx
                else: issue_w(q, g[1]); n += 2
                pos[0] += 1
        stn(k, 'B', 'setup done', 'p1')
        k("s_barrier")
        issue_x(q, 0, nx)
        ngl = gu_issue(k, V)
        stn(k, 'B', 'x issued'); stn(k, 'B', 'x issued', 'p1')
        k("s_waitcnt lgkmcnt(0)")
        k(f"s_add_u32 s{TAG}, s{TAG}, 1")
        k(f"s_lshl_b32 s36, s{CC}, 9")
        k(f"s_add_u32 s36, s36, {FL_0W}")
        k("v_lshl_add_u32 v5, v1, 3, s36")
        poll(k, 5, None)
        q.q = []
        stn(k, 'B', 'S0 seen'); stn(k, 'B', 'S0 seen', 'p1')
        order[:] = [g for g in order_all if g != ('x', 0)]
        pos[0] = 0
        issue_upto(-1, PROLOG)
        stn(k, 'B', 'prologue issued', 'p1')
        n = gu_process(k, V)
        for j in range(n): q.issue(('gs', j))
        q.wait(('w', 1, 1))
        stn(k, 'B', 'first slots landed'); stn(k, 'B', 'first slots landed', 'p1')
        k("s_barrier")
        for ks in range(19):
            issue_upto(ks, BUDGET)
            if ks == 7:
                q.wait(('gs', 11))
                job_flag(k, FL_0B, 61, NGUJ); q.issue(('gf', 0))
            if ks == 12:
                stats_flag_issue(k, V); q.issue(('sf', 0))
            if ks == 15:
                q.wait(('sf', 0))
                stats_fetch(k, V)
                q.issue(('st', 0)); q.issue(('st', 1)); q.issue(('st', 2))
            if ks == 18:
                q.wait(('st', 2))
                stats_store(k, V)
            if ks + 2 <= 19:
                q.wait(('w', ks + 2, 1))
                q.wait(('x', (ks + 2) >> 1, nx - 1))
            k("s_barrier")
        assert pos[0] == len(order)
        q.drain()
        k("s_waitcnt vmcnt(0) lgkmcnt(0)")
        if var == 'a':
            k(f"s_branch {N}_p1ld_done")
    k(f"{N}_p1ld_done:")
    stn(k, 'B', 'loader done'); stn(k, 'B', 'loader done', 'p1')
    k("s_barrier")
    if P1ONLY:
        stamp_flush(k, 0); k("s_endpgm")

def stats_flag_issue(k, V):
    k("v_and_b32 v4, 31, v1")
    k(f"s_lshl_b32 s36, s{RB}, 5")
    k("v_add_u32 v5, s36, v4")
    k("v_and_b32 v6, 3, v1")
    k("s_sub_u32 s37, s36, 4")
    k(f"s_cmp_eq_u32 s{RB}, 0")
    k("s_cselect_b32 s37, 0, s37")
    k("v_add_u32 v6, s37, v6")
    k("v_cmp_gt_u32 vcc, 32, v1")
    k("s_nop 1")
    k("v_cndmask_b32 v5, v6, v5, vcc")
    k("v_lshlrev_b32 v5, 3, v5")
    k(f"v_add_u32 v103, {FL_0A}, v5")
    k(f"buffer_load_dword v102, v103, s[8:11], 0 offen {SC}")

def stats_fetch(k, V):
    L = k.lab('sfok')
    k(f"v_cmp_ne_u32 vcc, s{TAG}, v102")
    k("s_nop 1")
    k(f"s_cbranch_vccz {L}")
    poll(k, 103, None)
    k(f"{L}:")
    k(f"s_lshl_b32 s36, s{RB}, 7")
    k("s_sub_u32 s36, s36, 16")
    k("v_add_u32 v4, s36, v1")
    k("v_lshlrev_b32 v5, 3, v4")
    k("v_mov_b32 v6, 0x80000000")
    k("v_cmp_gt_i32 vcc, 0, v4")
    k("s_nop 1")
    k("v_cndmask_b32 v5, v5, v6, vcc")
    k(f"s_mov_b32 s36, {WS_XS}")
    k(f"buffer_load_dwordx2 v[96:97], v5, s[8:11], s36 offen {SC}")
    k("v_add_u32 v4, 64, v4")
    k("v_lshlrev_b32 v5, 3, v4")
    k(f"buffer_load_dwordx2 v[98:99], v5, s[8:11], s36 offen {SC}")
    k(f"buffer_load_dwordx2 v[100:101], v5, s[8:11], s36 offen offset:512 {SC}")

def stats_store(k, V):
    L = k.lab('sts')
    k("s_cmp_lg_u32 s3, 4")
    k(f"s_cbranch_scc1 {L}")
    k("v_lshlrev_b32 v5, 3, v1")
    k(f"v_add_u32 v5, {STAB}, v5")
    k("ds_write_b64 v5, v[96:97]")
    k("ds_write_b64 v5, v[98:99] offset:512")
    k("s_mov_b64 exec, 0xffff")
    k("ds_write_b64 v5, v[100:101] offset:1024")
    k("s_mov_b64 exec, -1")
    k(f"{L}:")

def ksplit_gemm(k, N, tag, nks, a_off, a_stride_tb, w_off, depth):
    ACC = 32
    k("s_sub_u32 s49, s3, 4")
    for i in range(80): k(f"v_mov_b32 v{ACC+i}, 0")
    k(f"s_lshl_b32 s42, s{RB64}, 2")
    k(f"s_mul_i32 s44, s42, {a_stride_tb}")
    k(f"s_lshl_b32 s43, s49, 10")
    k(f"s_add_u32 s44, s44, s43")
    k(f"s_add_u32 s44, s44, {a_off}")
    k(f"s_mul_i32 s45, s{CG}, {nks*5120}")
    k(f"s_mul_i32 s43, s49, 5120")
    k(f"s_add_u32 s45, s45, s43")
    k(f"s_add_u32 s45, s45, {w_off}")
    k(f"s_sub_u32 s46, {nks+3}, s49")
    k("s_lshr_b32 s46, s46, 2")
    def issue(st):
        r = 36*st
        for tb in range(4):
            k(f"s_add_u32 s47, s44, {tb*a_stride_tb}")
            k(f"buffer_load_dwordx4 a[{r+4*tb}:{r+4*tb+3}], v2, s[8:11], s47 offen {SC}")
        for cb in range(5):
            if cb < 4:
                k(f"buffer_load_dwordx4 a[{r+16+4*cb}:{r+16+4*cb+3}], v2, s[8:11], s45 offen offset:{1024*cb} {SC}")
            else:
                k(f"s_add_u32 s47, s45, 4096")
                k(f"buffer_load_dwordx4 a[{r+16+4*cb}:{r+16+4*cb+3}], v2, s[8:11], s47 offen {SC}")
        k("s_add_u32 s44, s44, 4096")
        k(f"s_add_u32 s45, s45, {4*5120}")
    def mfmas(st):
        r = 36*st
        for cb in range(5):
            for tb in range(4):
                a = ACC + (tb*5+cb)*4
                k(f"v_mfma_f32_16x16x32_bf16 v[{a}:{a+3}], a[{r+16+4*cb}:{r+16+4*cb+3}], a[{r+4*tb}:{r+4*tb+3}], v[{a}:{a+3}]")
    for st in range(depth):
        issue(st)
    k(f"s_sub_u32 s48, s46, {depth}")
    L = k.lab('kl')
    k(f"{L}:")
    for st in range(depth):
        Lno = k.lab('ni'); Lj = k.lab('nj')
        k("s_cmp_eq_u32 s48, 0")
        k(f"s_cbranch_scc1 {Lno}")
        k(f"s_waitcnt vmcnt({9*(depth-1)})")
        mfmas(st)
        issue(st)
        k("s_sub_u32 s48, s48, 1")
        k(f"s_branch {Lj}")
        k(f"{Lno}:")
        for t in range(depth):
            k(f"s_waitcnt vmcnt({9*(depth-1-t)})")
            mfmas((st + t) % depth)
        k(f"s_branch {N}_{tag}_kdone")
        k(f"{Lj}:")
    k(f"s_branch {L}")
    k(f"{N}_{tag}_kdone:")
    stn(k, 'B', tag + ' K done')

def reduce_scatter(k):
    ACC = 32
    k("s_mul_i32 s42, s49, 20480")
    k(f"s_add_u32 s42, s42, {RED}")
    k("v_add_u32 v3, s42, v2")
    k("s_nop 7")
    for tb in range(4):
        for cb in range(5):
            a = ACC + (tb*5+cb)*4
            k(f"ds_write_b128 v3, v[{a}:{a+3}] offset:{(tb*5+cb)*1024}")
    k("s_waitcnt lgkmcnt(0)")
    k("s_barrier")
    k("s_mul_i32 s42, s49, 5120")
    k(f"s_add_u32 s42, s42, {RED}")
    k("v_add_u32 v3, s42, v2")
    k(f"v_add_u32 v4, {3*20480}, v3")
    for src in range(4):
        for cb in range(5):
            r = 32 + (src*5+cb)*4
            if src < 3:
                k(f"ds_read_b128 v[{r}:{r+3}], v3 offset:{src*20480 + cb*1024}")
            else:
                k(f"ds_read_b128 v[{r}:{r+3}], v4 offset:{cb*1024}")
    k("s_waitcnt lgkmcnt(0)")
    for i in range(20):
        k(f"v_add_f32 v{32+i}, v{32+i}, v{52+i}")
        k(f"v_add_f32 v{72+i}, v{72+i}, v{92+i}")
    for i in range(20):
        k(f"v_add_f32 v{32+i}, v{32+i}, v{72+i}")

def tile_ids(k):
    k("v_lshlrev_b32 v2, 4, v1")
    k("v_and_b32 v5, 15, v1")
    k("v_lshrrev_b32 v6, 4, v1")
    k(f"s_lshl_b32 s42, s{RB64}, 6")
    k("s_sub_u32 s43, s3, 4")
    k("s_lshl_b32 s43, s43, 4")
    k("s_add_u32 s42, s42, s43")
    k("v_add_u32 v7, s42, v5")

def hfrag_addr_setup(k):
    k("v_lshrrev_b32 v21, 4, v7")
    k("s_movk_i32 s42, 20480")
    k("v_mul_lo_u32 v21, v21, s42")
    k("v_lshl_add_u32 v21, v5, 4, v21")
    k("v_and_b32 v22, 1, v6")
    k("v_lshl_add_u32 v21, v22, 3, v21")
    k("v_lshrrev_b32 v22, 1, v6")
    k(f"s_mul_i32 s42, s{CG}, 10")
    k("v_add_u32 v22, s42, v22")

def add_res_round(k):
    for cb in range(5):
        for i in range(2):
            x = 112 + 2*cb + i
            k(f"v_lshlrev_b32 v16, 16, v{x}")
            k(f"v_and_b32 v17, 0xffff0000, v{x}")
            k(f"v_add_f32 v{32+4*cb+2*i}, v{32+4*cb+2*i}, v16")
            k(f"v_add_f32 v{33+4*cb+2*i}, v{33+4*cb+2*i}, v17")
    for cb in range(5):
        for i in range(2):
            k(f"v_cvt_pk_bf16_f32 v{56+2*cb+i}, v{32+4*cb+2*i}, v{33+4*cb+2*i}")

def p2_compute(k, N):
    q = Queue(k, 'vmcnt', 63)
    k("s_sub_u32 s32, s3, 4")
    k(f"s_mul_i32 s36, s{CG}, 5")
    k("s_lshr_b32 s36, s36, 2")
    k("s_mul_i32 s36, s36, 40")
    k("v_min_u32 v2, 0x4f, v1")
    k("v_add_u32 v2, s36, v2")
    k("v_lshlrev_b32 v2, 3, v2")
    k(f"v_add_u32 v5, {FL_0O}, v2")
    k(f"buffer_load_dword v120, v5, s[8:11], 0 offen {SC}")
    k(f"buffer_load_dword v121, v5, s[8:11], 0 offen offset:128 {SC}")
    q.issue(('of', 1)); q.issue(('of', 0))
    k("v_lshlrev_b32 v2, 4, v1")
    k("s_mul_i32 s23, s32, 25600")
    k(f"s_mul_i32 s22, s{CG}, 102400")
    k("s_add_u32 s22, s22, s23")
    k(f"s_add_u32 s22, s22, {WS_WOP}")
    k("s_barrier")
    q.wait(('of', 0))
    Lok = k.lab('wook'); Lre = k.lab('wore')
    k(f"{Lre}:")
    k(f"v_cmp_ne_u32 vcc, s{TAG}, v120")
    k(f"v_cmp_ne_u32 s[36:37], s{TAG}, v121")
    k("s_nop 1")
    k("s_or_b64 vcc, vcc, s[36:37]")
    k(f"s_cbranch_vccz {Lok}")
    k(f"s_sleep {SLEEP}")
    k(f"buffer_load_dword v120, v5, s[8:11], 0 offen {SC}")
    k(f"buffer_load_dword v121, v5, s[8:11], 0 offen offset:128 {SC}")
    k("s_waitcnt vmcnt(0)")
    k(f"s_branch {Lre}")
    k(f"{Lok}:")
    for f in range(25):
        k(f"s_add_u32 m0, s23, {WOL + f*1024}")
        k(f"s_add_u32 s32, s22, {f*1024}")
        k(f"buffer_load_dwordx4 v2, s[8:11], s32 offen {SC} lds")
        q.issue(('wo', f))
    tile_ids(k)
    mk_srd(k, 4, 16, S*D*2)
    k("s_movk_i32 s42, 1280")
    k("v_mul_lo_u32 v8, v7, s42")
    k("v_lshl_add_u32 v8, v6, 3, v8")
    k(f"s_mul_i32 s42, s{CG}, 160")
    k("v_add_u32 v8, s42, v8")
    for cb in range(5):
        k(f"buffer_load_dwordx2 v[{112+2*cb}:{113+2*cb}], v8, s[4:7], 0 offen offset:{32*cb}")
        q.issue(('res', cb))
    k(f"s_lshl_b32 s36, s{RB}, 7")
    k(f"s_add_u32 s36, s36, {FL_1}")
    k("v_lshl_add_u32 v4, v5, 2, s36")
    k("s_sub_u32 s49, s3, 4")
    k(f"s_lshl_b32 s42, s{RB64}, 2")
    k("s_add_u32 s42, s42, s49")
    k("s_mul_i32 s44, s42, 20480")
    k(f"s_add_u32 s44, s44, {WS_O}")
    k(f"v_add_u32 v9, {WOL}, v2")
    k("v_add_u32 v10, 0x8000, v9")
    k("v_add_u32 v11, 0x10000, v9")
    k("v_add_u32 v12, 0x18000, v9")
    q.wait(('wo', 24))
    k("s_barrier")
    stn(k, 'B', 'D')
    poll(k, 4, None)
    stn(k, 'B', 'S1 seen')
    for ks in range(20):
        if ks % 4 == 0: k(f"s_add_u32 s45, s44, {ks*1024}")
        k(f"buffer_load_dwordx4 a[{4*ks}:{4*ks+3}], v2, s[8:11], s45 offen offset:{(ks % 4)*1024} {SC}")
    lq = Queue(k, 'lgkmcnt', 15)
    NB = 6
    def rd(n):
        off = n*1024
        b = (9, 10, 11, 12)[off >> 15]
        r = 64 + 4*(n % NB)
        k(f"ds_read_b128 v[{r}:{r+3}], v{b} offset:{off & 0x7fff}")
        lq.issue((n, 1))
    for n in range(NB - 1): rd(n)
    for ks in range(20):
        k(f"s_waitcnt vmcnt({19 - ks})")
        for cb in range(5):
            n = ks*5 + cb
            if n + NB - 1 < 100: rd(n + NB - 1)
            lq.wait((n, 1))
            r = 64 + 4*(n % NB)
            a = 32 + 4*cb
            c = f"v[{a}:{a+3}]" if ks else "0"
            k(f"v_mfma_f32_16x16x32_bf16 v[{a}:{a+3}], v[{r}:{r+3}], a[{4*ks}:{4*ks+3}], {c}")
    stn(k, 'B', 'p2 K done')
    k("s_nop 7")
    add_res_round(k)
    k("v_mov_b32 v18, 0")
    k("v_mov_b32 v19, 0")
    for i in range(10):
        k(f"v_lshlrev_b32 v16, 16, v{56+i}")
        k(f"v_and_b32 v17, 0xffff0000, v{56+i}")
        k("v_add_f32 v18, v18, v16")
        k("v_fmac_f32 v19, v16, v16")
        k("v_add_f32 v18, v18, v17")
        k("v_fmac_f32 v19, v17, v17")
    allreduce_rows(k, 18, 20)
    allreduce_rows(k, 19, 20)
    hfrag_addr_setup(k)
    k(f"s_mov_b32 s42, {WS_H}")
    for cb in range(5):
        k("v_lshrrev_b32 v23, 2, v22")
        k("v_lshl_add_u32 v24, v23, 10, v21")
        k("v_and_b32 v23, 3, v22")
        k("v_lshl_add_u32 v24, v23, 8, v24")
        k(f"buffer_store_dwordx2 v[{56+2*cb}:{57+2*cb}], v24, s[8:11], s42 offen {SC}")
        k("v_add_u32 v22, 2, v22")
    k("v_lshlrev_b32 v23, 6, v7")
    k(f"s_lshl_b32 s42, s{CG}, 3")
    k(f"s_add_u32 s42, s42, {WS_ST}")
    k("s_mov_b64 exec, 0xffff")
    k(f"buffer_store_dwordx2 v[18:19], v23, s[8:11], s42 offen {SC}")
    k("s_mov_b64 exec, -1")
    k("s_waitcnt vmcnt(0)")

def p4_compute(k, N):
    tile_ids(k)
    mk_srd(k, 4, 30, S*D*2)
    hfrag_addr_setup(k)
    k(f"s_mov_b32 s42, {WS_H}")
    for cb in range(5):
        k("v_lshrrev_b32 v23, 2, v22")
        k("v_lshl_add_u32 v24, v23, 10, v21")
        k("v_and_b32 v23, 3, v22")
        k("v_lshl_add_u32 v24, v23, 8, v24")
        k(f"buffer_load_dwordx2 v[{112+2*cb}:{113+2*cb}], v24, s[8:11], s42 offen {SC}")
        k("v_add_u32 v22, 2, v22")
    poll_wd(k)
    k(f"s_lshl_b32 s36, s{RB}, 7")
    k(f"s_add_u32 s36, s36, {FL_3}")
    k("v_lshl_add_u32 v4, v5, 2, s36")
    poll(k, 4, None)
    stn(k, 'B', 'S3 seen')
    ksplit_gemm(k, N, 'p4', 54, WS_HH, 54*1024, WS_WDP, depth=3)
    reduce_scatter(k)
    add_res_round(k)
    k("s_movk_i32 s42, 1280")
    k("v_mul_lo_u32 v8, v7, s42")
    k("v_lshl_add_u32 v8, v6, 3, v8")
    k(f"s_mul_i32 s42, s{CG}, 160")
    k("v_add_u32 v8, s42, v8")
    for cb in range(5):
        k(f"buffer_store_dwordx2 v[{56+2*cb}:{57+2*cb}], v8, s[4:7], 0 offen offset:{32*cb}")

def p3_units(k):
    k(f"s_mul_i32 s42, s{CC}, 7")
    k(f"s_sub_u32 s43, s{CC}, 12")
    k(f"s_cmp_gt_u32 s{CC}, 12")
    k("s_cselect_b32 s43, s43, 0")
    k("s_sub_u32 s42, s42, s43")
    k(f"s_cmp_lt_u32 s{CC}, 12")
    k("s_cselect_b32 s43, 7, 6")

def p3_dma(k, hi, sreg_g, sreg_l):
    base = (hi % NHS)*HSLOT
    for f in range(5):
        k(f"s_add_u32 m0, s{sreg_l}, {base + f*1024}")
        k(f"s_add_u32 s50, s{sreg_g}, {hi*HSLOT + f*1024}")
        k(f"buffer_load_dwordx4 v2, s[8:11], s50 offen {SC} lds")

def p3_compute(k, N):
    k("v_lshlrev_b32 v2, 4, v1")
    p3_units(k)
    poll_wgu(k)
    k("s_mul_i32 s47, s42, 40960")
    k("s_mul_i32 s48, s3, 5120")
    k("s_add_u32 s47, s47, s48")
    k(f"s_add_u32 s47, s47, {WS_WGU}")
    for hi in range(3):
        p3_dma(k, hi, 47, 48)
    k("s_lshl_b32 s45, s3, 6")
    k("v_add_u32 v3, s45, v1")
    k("v_lshlrev_b32 v4, 2, v3")
    k("s_lshl_b32 s45, s42, 7")
    k(f"s_add_u32 s45, s45, {WS_CSP}")
    for c in range(10):
        k(f"s_add_u32 s46, s45, {c*108*128}")
        k(f"buffer_load_dword v{16+c}, v4, s[8:11], s46 offen {SC}")
    k("s_waitcnt vmcnt(0)")
    for c in range(5): k(f"v_add_f32 v{16+c}, v{16+c}, v{21+c}")
    k("v_add_f32 v16, v16, v17")
    k("v_add_f32 v18, v18, v19")
    k("v_add_f32 v16, v16, v20")
    k("v_add_f32 v16, v16, v18")
    k(f"v_add_u32 v4, {GU_CS}, v4")
    k("s_barrier")
    k("v_cmp_gt_u32 vcc, 224, v3")
    k("s_and_saveexec_b64 s[52:53], vcc")
    k("ds_write_b32 v4, v16")
    k("s_mov_b64 exec, s[52:53]")
    stn(k, 'A', 'F')
    poll_row(k, FL_2)
    stn(k, 'A', 'S2 seen')
    k("v_and_b32 v3, 31, v1")
    k("v_lshrrev_b32 v4, 5, v1")
    k(f"s_lshl_b32 s44, s{RB}, 7")
    k("s_lshl_b32 s45, s3, 5")
    k("s_add_u32 s44, s44, s45")
    k("v_add_u32 v5, s44, v3")
    k("v_lshrrev_b32 v6, 4, v5")
    k("s_movk_i32 s44, 20480")
    k("v_mul_lo_u32 v6, v6, s44")
    k("v_and_b32 v7, 15, v5")
    k("v_lshl_add_u32 v6, v7, 4, v6")
    k("v_lshl_add_u32 v6, v4, 8, v6")
    def treg(ks): return f"a[{4*ks}:{4*ks+3}]" if ks < 32 else f"v[{96+4*(ks-32)}:{96+4*(ks-32)+3}]"
    k("v_lshlrev_b32 v7, 6, v5")
    k("v_lshl_add_u32 v7, v4, 5, v7")
    k(f"s_mov_b32 s44, {WS_ST}")
    k(f"buffer_load_dwordx4 v[16:19], v7, s[8:11], s44 offen {SC}")
    k(f"buffer_load_dwordx4 v[20:23], v7, s[8:11], s44 offen offset:16 {SC}")
    for ks in range(40):
        off = (ks >> 1)*1024 + (ks & 1)*512
        if ks % 8 == 0: k(f"s_mov_b32 s44, {WS_H + (off & ~0xfff)}")
        k(f"buffer_load_dwordx4 {treg(ks)}, v6, s[8:11], s44 offen offset:{off & 0xfff} {SC}")
    k("s_waitcnt vmcnt(40)")
    k("v_add_f32 v16, v16, v18")
    k("v_add_f32 v17, v17, v19")
    k("v_add_f32 v20, v20, v22")
    k("v_add_f32 v21, v21, v23")
    k("v_add_f32 v16, v16, v20")
    k("v_add_f32 v17, v17, v21")
    for v in (16, 17):
        k(f"v_mov_b32 v18, v{v}")
        k("s_nop 1")
        k(f"v_permlane32_swap_b32 v18, v{v}")
        k("s_nop 1")
        k(f"v_add_f32 v{v}, v{v}, v18")
    k(f"v_mul_f32 v16, {1.0/640!r}, v16")
    k(f"v_mul_f32 v17, {1.0/640!r}, v17")
    k("v_fma_f32 v17, -v16, v16, v17")
    k("v_max_f32 v17, 0, v17")
    k("v_add_f32 v17, 1e-5, v17")
    k("v_rcp_f32 v9, v17")
    k("v_sub_f32 v8, 0, v16")
    k("v_lshrrev_b32 v10, 4, v5")
    k("s_mov_b32 s44, 55296")
    k("v_mul_lo_u32 v10, v10, s44")
    k("v_and_b32 v7, 15, v5")
    k("v_lshl_add_u32 v10, v7, 4, v10")
    k("v_lshl_add_u32 v10, v4, 8, v10")
    k("v_lshlrev_b32 v11, 4, v4")
    k(f"v_add_u32 v11, {GU_CS}, v11")
    k("v_mov_b32 v12, v2")
    k(f"v_add_u32 v13, {3*HSLOT}, v2")
    k(f"v_add_u32 v14, {6*HSLOT}, v2")
    ACC = (16, 32); WF = 48; CS = 60
    lq = Queue(k, 'lgkmcnt', 15)
    def rd(hi, f):
        slot = hi % NHS
        b = (12, 13, 14)[slot // 3]
        o = (slot % 3)*HSLOT + f*1024
        r = WF + 4*((hi*20 + f) % 3)
        k(f"ds_read_b128 v[{r}:{r+3}], v{b} offset:{o}")
        lq.issue(('w', hi, f))
    def epilogue_steps(ui):
        A = ACC[ui % 2]
        L = []
        for a in range(4): L.append(('cs', ui, a))
        L.append(('waitcs', ui))
        for i in range(16): L.append(f"v_fma_f32 v{CS+i}, v8, v{CS+i}, v{A+i}")
        for i in range(8): L.append(f"v_mul_f32 v{CS+i}, v{CS+i}, v{CS+8+i}")
        for i in range(8): L.append(f"v_mul_f32 v{CS+i}, v{CS+i}, v9")
        for i in range(4): L.append(f"v_cvt_pk_bf16_f32 v{CS+8+i}, v{CS+2*i}, v{CS+2*i+1}")
        L.append(('addr', ui))
        L.append(f"buffer_store_dwordx4 v[{CS+8}:{CS+11}], v10, s[8:11], s46 offen {SC}")
        return L
    def emit(s):
        if isinstance(s, str): k(s); return
        if s[0] == 'cs':
            _, ui, a = s
            k(f"ds_read_b128 v[{CS+4*a}:{CS+4*a+3}], v11 offset:{ui*128 + a*32}")
            lq.issue(('cs', ui, a))
        elif s[0] == 'waitcs':
            lq.wait(('cs', s[1], 3))
        elif s[0] == 'addr':
            u = s[1]
            k(f"s_add_u32 s45, s42, {u}")
            k("s_lshr_b32 s46, s45, 1")
            k("s_lshl_b32 s46, s46, 10")
            k("s_and_b32 s45, s45, 1")
            k("s_lshl_b32 s45, s45, 9")
            k("s_add_u32 s46, s46, s45")
            k(f"s_add_u32 s46, s46, {WS_HH}")
    k("s_waitcnt vmcnt(0) lgkmcnt(0)")
    stn(k, 'A', 'h frags landed')
    k("s_barrier")
    stn(k, 'A', 'P3 B(-1)')
    rd(0, 0); rd(0, 1)
    pend = []; saved = None
    for hi in range(14):
        ui, half = hi // 2, hi % 2
        if hi == 12:
            k("s_cmp_eq_u32 s43, 6")
            k(f"s_cbranch_scc1 {N}_tail6")
            saved = (list(pend), list(lq.q))
        A = ACC[ui % 2]
        for f in range(20):
            ks = half*20 + f
            nf = f + 2
            nhi = hi + nf // 20
            if nhi < 14: rd(nhi, nf % 20)
            lq.wait(('w', hi, f))
            r = WF + 4*((hi*20 + f) % 3)
            src_c = f"v[{A}:{A+15}]" if ks > 0 else "0"
            k(f"v_mfma_f32_32x32x16_bf16 v[{A}:{A+15}], v[{r}:{r+3}], {treg(ks)}, {src_c}")
            if pend and ks >= 2:
                for _ in range(2):
                    if pend: emit(pend.pop(0))
        k("s_barrier")
        if half == 1:
            pend = epilogue_steps(ui)
    def flush(L):
        k("s_nop 7"); k("s_nop 7")
        for s in L: emit(s)
    stn(k, 'A', 'P3 loop end')
    flush(pend)
    k(f"s_branch {N}_p3end")
    k(f"{N}_tail6:")
    lq.q = saved[1]
    flush(saved[0])
    k("s_waitcnt lgkmcnt(0)")
    k("s_barrier"); k("s_barrier")
    k(f"{N}_p3end:")
    k("s_waitcnt vmcnt(0)")

def p3_loader(k, N):
    k("v_lshlrev_b32 v2, 4, v1")
    k("v_mov_b32 v120, v2")
    p3_units(k)
    k("s_sub_u32 s44, s3, 4")
    k("s_mul_i32 s47, s42, 40960")
    k("s_mul_i32 s48, s44, 5120")
    k("s_add_u32 s47, s47, s48")
    k(f"s_add_u32 s47, s47, {WS_WGU}")
    q = Queue(k, 'vmcnt', 63)
    def dma(hi):
        base = (hi % NHS)*HSLOT
        for f in range(5):
            k(f"s_add_u32 m0, s48, {base + f*1024}")
            k(f"s_add_u32 s50, s47, {hi*HSLOT + f*1024}")
            k(f"buffer_load_dwordx4 v120, s[8:11], s50 offen {SC} lds")
            q.issue(('h', hi, f))
    for hi in range(3, NHS - 1): dma(hi)
    k("s_barrier")
    for it in range(14):
        nk = it + NHS - 1
        if nk < 14:
            if nk >= 12:
                k("s_cmp_eq_u32 s43, 6")
                k("s_cselect_b32 s36, 0x80000000, 0")
                k("v_or_b32 v120, s36, v2")
            dma(nk)
        if it == 1:
            n = wd_issue(k)
            for j in range(n): q.issue(('wl', j))
            k("v_lshlrev_b32 v2, 4, v1")
        if it == 5:
            q.wait(('wl', 31))
            n = wd_process(k)
            for j in range(n): q.issue(('ws', j))
        if it == 9:
            q.wait(('ws', 3))
            job_flag(k, FL_0D, 61, NWDJ); q.issue(('wf', 0))
        need = it + 2
        if 3 <= need < 14:
            q.wait(('h', need, 4))
        k("s_barrier")

def kernel(name):
    N = 'P'
    k = Kern(name)
    k("s_cmp_ge_u32 s2, 256")
    k(f"s_cbranch_scc1 {N}_end")
    load_args(k)
    k("v_and_b32 v1, 63, v0")
    wave_id(k, 3, 2)
    stamp_init(k); stamp(k, 0); STN['A-waves'][0] = 'start'; STN['B-waves'][0] = 'start'
    k("s_and_b32 s36, s2, 7")
    k("s_lshr_b32 s37, s2, 3")
    k("s_lshr_b32 s38, s36, 1")
    k("s_lshl_b32 s39, s38, 2")
    k("s_lshr_b32 s40, s37, 3")
    k(f"s_add_u32 s{RB}, s39, s40")
    k("s_and_b32 s36, s36, 1")
    k("s_lshl_b32 s39, s36, 3")
    k("s_and_b32 s40, s37, 7")
    k(f"s_add_u32 s{CC}, s39, s40")
    k("s_lshr_b32 s40, s37, 2")
    k("s_and_b32 s40, s40, 1")
    k(f"s_lshl_b32 s39, s{RB}, 1")
    k(f"s_add_u32 s{RB64}, s39, s40")
    k("s_lshl_b32 s39, s36, 2")
    k("s_and_b32 s40, s37, 3")
    k(f"s_add_u32 s{CG}, s39, s40")
    k("s_waitcnt lgkmcnt(0)")
    k(f"s_mov_b32 s36, {FL_EPOCH}")
    k(f"s_load_dword s{TAG}, s[34:35], s36")
    mk_srd(k, 8, 34, WS_BYTES)
    k("s_cmp_ge_u32 s3, 4")
    k(f"s_cbranch_scc1 {N}_B")

    a_start(k, N)
    p1_compute(k, N)
    stn(k, 'A', 'attn stores issued')
    k("s_waitcnt vmcnt(0)")
    stn(k, 'A', 'attn drained')
    k("s_barrier")
    Lf = k.lab('f1')
    k("s_cmp_lg_u32 s3, 0")
    k(f"s_cbranch_scc1 {Lf}")
    k(f"s_lshl_b32 s40, s{RB}, 5")
    k(f"s_add_u32 s40, s40, s{CC}")
    set_flag(k, FL_1, 40)
    k(f"{Lf}:")
    p3_compute(k, N)
    stn(k, 'A', 'P3 end drained')
    k("s_barrier")
    Lf = k.lab('f3')
    k("s_cmp_lg_u32 s3, 0")
    k(f"s_cbranch_scc1 {Lf}")
    k(f"s_lshl_b32 s40, s{RB}, 5")
    k(f"s_add_u32 s40, s40, s{CC}")
    set_flag(k, FL_3, 40)
    k("s_cmp_lg_u32 s2, 0")
    k(f"s_cbranch_scc1 {Lf}")
    k(f"v_mov_b32 v3, s{TAG}")
    k("v_mov_b32 v4, 0")
    k(f"s_mov_b32 s36, {FL_EPOCH}")
    k("s_mov_b64 exec, 1")
    k(f"buffer_store_dword v3, v4, s[8:11], s36 offen {SC}")
    k("s_mov_b64 exec, -1")
    k(f"{Lf}:")
    k("s_barrier")
    stn(k, 'A', 'H')
    if DBGSTAMP:
        k("s_cmp_lg_u32 s3, 0"); k(f"s_cbranch_scc1 {N}_nodbgA"); stamp_flush_dbg(k, 'A'); k(f"{N}_nodbgA:")
    else: stamp_flush(k, 0)
    k("s_endpgm")

    k(f"{N}_B:")
    p1_loader(k, N)
    p2_compute(k, N)
    stn(k, 'B', 'P2 drained')
    k("s_barrier")
    Lf = k.lab('f2')
    k("s_cmp_lg_u32 s3, 4")
    k(f"s_cbranch_scc1 {Lf}")
    k(f"s_lshl_b32 s40, s{RB}, 5")
    k(f"s_and_b32 s41, s{RB64}, 1")
    k("s_lshl_b32 s41, s41, 3")
    k("s_add_u32 s40, s40, s41")
    k(f"s_add_u32 s40, s40, s{CG}")
    set_flag(k, FL_2, 40)
    k(f"{Lf}:")
    p3_loader(k, N)
    k("s_barrier")
    p4_compute(k, N)
    stn(k, 'B', 'out stores issued')
    k("s_waitcnt vmcnt(0)")
    stn(k, 'B', 'end')
    if DBGSTAMP:
        k("s_cmp_lg_u32 s3, 4"); k(f"s_cbranch_scc1 {N}_nodbgB"); stamp_flush_dbg(k, 'B'); k(f"{N}_nodbgB:")
    else: stamp_flush(k, 0)
    k(f"{N}_end:")
    return k.text(256, 102, acc=128)

def header():
    H = open('cdna_kernels/%s.s.ref' % NAME).read().split('\n')
    return '\n'.join(l for l in H if l.startswith(';') and '@launch' not in l and 'Override' not in l and 'grid=ceil' not in l) + '\n'

def main(stem):
    MAIN = NAME + "_kernel"
    txt = kernel(MAIN)
    launches = [(MAIN, 256, 512, LDS_BYTES)]
    assemble([txt], launches, stem, hdr=header())
    import json
    json.dump(launches, open(stem + '.json', 'w'))
    json.dump(STN, open(stem + '.names.json', 'w'))
    s = open(stem + '.s').read()
    s = s.replace(f"; @launch kernel={MAIN} grid=", "; @launch grid=")
    open(stem + '_final.s', 'w').write(s)

if __name__ == '__main__':
    main(sys.argv[1] if len(sys.argv) > 1 else 'pers')
```
